```python
import torch

def _softmax(x, axis=-1):
    return torch.softmax(x, dim=axis)

def _gelu(x):
    return torch.nn.functional.gelu(x, approximate='tanh')

def _silu(x):
    return torch.nn.functional.silu(x)

def _sigmoid(x):
    return torch.sigmoid(x)

def _layernorm(x, axis=-1, eps=1e-05):
    m = x.mean(dim=axis, keepdim=True)
    v = x.var(dim=axis, keepdim=True, unbiased=False)
    return (x - m) / torch.sqrt(v + eps)

def _scatter_add(tgt, idx, src, axis=0):
    return tgt.clone().index_add_(axis, idx, src)

def _segment_sum(src, seg, n):
    out = torch.zeros((n,) + src.shape[1:], dtype=src.dtype)
    return out.index_add_(0, seg, src)

def _pad(x, pw):
    flat = tuple((v for pair in reversed(pw) for v in pair))
    return torch.nn.functional.pad(x, flat)
kernel_name = 'parallel_sum__memory_aug_recurrent_mem_tr__geglu_ffn__prompt'

def setup_inputs():

    _w = lambda a: (lambda t: t.to(torch.bfloat16) if t.is_floating_point() else t)(torch.as_tensor(a))

    def _A_setup():
        B, S, Dm = (1, 2048, 512)
        H, Dh = (32, 128)
        M, seg = (8, 32)
        seg = min(seg, S)
        S = S // seg * seg
        return {'x': _w((lambda *s: torch.randn(*s, dtype=torch.bfloat16) * 0.05)(B, S, Dm)), 'mem0': _w((lambda *s: torch.randn(*s, dtype=torch.bfloat16) * 1.6)(B, M, Dm)), 'Wq': _w((lambda *s: torch.randn(*s, dtype=torch.bfloat16) * 0.8)(Dm, H, Dh) * Dm ** (-0.5)), 'Wk': _w((lambda *s: torch.randn(*s, dtype=torch.bfloat16) * 0.8)(Dm, H, Dh) * Dm ** (-0.5)), 'Wv': _w((lambda *s: torch.randn(*s, dtype=torch.bfloat16) * 1.6)(Dm, H, Dh) * Dm ** (-0.5)), 'Wo': _w((lambda *s: torch.randn(*s, dtype=torch.bfloat16) * 1.6)(H, Dh, Dm) * (H * Dh) ** (-0.5)), 'seg_len': seg}
    _A_in = _A_setup()

    def _B_setup():
        B, S, D, F = (1, 2048, 512, 1792)
        return {'x': _w((lambda *s: torch.randn(*s, dtype=torch.bfloat16) * 0.05)(B, S, D)), 'w_gate': _w((lambda *s: torch.randn(*s, dtype=torch.bfloat16) * 0.05)(D, F)), 'w_up': _w((lambda *s: torch.randn(*s, dtype=torch.bfloat16) * 0.05)(D, F)), 'w_down': _w((lambda *s: torch.randn(*s, dtype=torch.bfloat16) * 0.05)(F, D))}
    _B_in = _B_setup()
    return {'A_x': _A_in['x'], 'A_mem0': _A_in['mem0'], 'A_Wq': _A_in['Wq'], 'A_Wk': _A_in['Wk'], 'A_Wv': _A_in['Wv'], 'A_Wo': _A_in['Wo'], 'A_seg_len': _A_in['seg_len'], 'B_x': _B_in['x'], 'B_w_gate': _B_in['w_gate'], 'B_w_up': _B_in['w_up'], 'B_w_down': _B_in['w_down']}

def reference(A_x, A_mem0, A_Wq, A_Wk, A_Wv, A_Wo, A_seg_len, B_x, B_w_gate, B_w_up, B_w_down):

    def _A_ref(x, mem0, Wq, Wk, Wv, Wo, seg_len):
        B, S, Dm = x.shape
        H, Dh = (Wq.shape[1], Wq.shape[2])
        M = mem0.shape[1]
        scale = Dh ** (-0.5)
        n_seg = S // seg_len
        L = M + seg_len
        idx = torch.arange(L)
        mask = (idx[:, None] < M) | (idx[:, None] >= idx[None, :])
        mem = mem0
        outs = []
        for s in range(n_seg):
            xs = x[:, s * seg_len:(s + 1) * seg_len, :].clone()
            h = torch.concatenate([mem, xs], axis=1)
            q = torch.einsum('btd,dhe->bhte', h, Wq)
            k = torch.einsum('btd,dhe->bhte', h, Wk)
            v = torch.einsum('btd,dhe->bhte', h, Wv)
            scores = torch.einsum('bhqe,bhke->bhqk', q, k) * scale
            scores = torch.where(mask[None, None], scores, -1000000000.0)
            p = _softmax(scores, axis=-1)
            o = torch.einsum('bhqk,bhke->bhqe', p, v)
            o = torch.einsum('bhte,hed->btd', o, Wo)
            mem = o[:, :M, :].clone()
            outs.append(o[:, M:, :])
        return torch.concatenate(outs, axis=1)

    def _B_ref(x, w_gate, w_up, w_down):
        return _gelu(x @ w_gate) * (x @ w_up) @ w_down
    x = A_x
    xn = _layernorm(x, axis=-1)
    return x + _A_ref(xn, A_mem0, A_Wq, A_Wk, A_Wv, A_Wo, A_seg_len) + _B_ref(xn, B_w_gate, B_w_up, B_w_down)
```

```python
import re

REG = re.compile(r'^(v|a|s)(\d+)$|^(v|a|s)\[(\d+):(\d+)\]$')
def regs_of(tok):
    tok = tok.strip()
    if tok.startswith('-'): tok = tok[1:]
    if tok.startswith('|') and tok.endswith('|'): tok = tok[1:-1]
    if tok in ('vcc', 'vcc_lo', 'vcc_hi'): return {('s', 106), ('s', 107)}
    if tok in ('exec', 'exec_lo', 'exec_hi'): return {('s', 126), ('s', 127)}
    if tok == 'm0': return {('s', 124)}
    m = REG.match(tok)
    if not m: return set()
    if m.group(1): return {(m.group(1), int(m.group(2)))}
    return {(m.group(3), i) for i in range(int(m.group(4)), int(m.group(5)) + 1)}

TRANS = ('v_exp_', 'v_log_', 'v_rcp_', 'v_rsq_', 'v_sqrt_', 'v_sin_', 'v_cos_')
VCC = {('s', 106), ('s', 107)}

class Ins:
    __slots__ = ('text', 'op', 'kind', 'dst', 'src', 'passes', 'C', 'AB', 'states', 'label', 'target', 'wide', 'dpp', 'data', 'lds')
    def __init__(self, text):
        self.text = text
        self.label = None; self.target = None; self.kind = 'other'; self.dst = set(); self.src = set()
        self.passes = 0; self.C = set(); self.AB = set(); self.states = 1; self.wide = False; self.dpp = False
        self.data = set(); self.lds = False
        t = text.split(';')[0].strip()
        if not t or t.startswith('.') and not t.endswith(':'):
            self.kind = 'none'; self.states = 0; self.op = ''; return
        if t.endswith(':'):
            self.kind = 'label'; self.label = t[:-1]; self.states = 0; self.op = ''; return
        parts = t.split(None, 1)
        op = self.op = parts[0]
        rest = parts[1] if len(parts) > 1 else ''
        ops = [x.strip() for x in re.split(r',(?![^\[]*\])', rest)] if rest else []
        mods = ''
        if ops:
            last = ops[-1].split(None, 1)
            ops[-1] = last[0]
            mods = last[1] if len(last) > 1 else ''
        R = [regs_of(o) for o in ops]
        U = lambda l: set().union(*l) if l else set()
        if op == 's_nop':
            self.kind = 'nop'; self.states = int(ops[0]) + 1
        elif op.startswith('v_mfma') or op.startswith('v_smfmac'):
            self.kind = 'mfma'
            self.passes = 8 if '32x32' in op else 4
            self.dst = R[0]
            if op.startswith('v_smfmac'):
                self.C = R[0]; self.AB = R[1] | R[2] | R[3]
            else:
                self.C = R[3]; self.AB = R[1] | R[2]
            self.src = self.C | self.AB
        elif op.startswith('v_'):
            self.kind = 'valu'
            self.dpp = any(k in mods for k in ('row_', 'quad_perm', 'wave_', 'bank_mask'))
            if 'permlane' in op and 'swap' in op or op.startswith('v_swap'):
                self.dst = R[0] | R[1]; self.src = R[0] | R[1]
            elif op.startswith('v_cmp'):
                self.dst = R[0]; self.src = U(R[1:])
            elif '_co_' in op:
                self.dst = R[0] | R[1]; self.src = U(R[2:])
            else:
                self.dst = R[0]; self.src = U(R[1:])
                if op.startswith(('v_fmac', 'v_mac', 'v_dot2c', 'v_writelane', 'v_pk_fmac')) or self.dpp: self.src |= R[0]
                if op.startswith('v_cndmask') and len(ops) == 3: self.src |= VCC
        elif op.startswith('ds_'):
            self.kind = 'ds'
            if 'read' in op or 'rtn' in op or 'permute' in op or 'swizzle' in op:
                self.dst = R[0]; self.src = U(R[1:])
                if 'd16' in op: self.src |= R[0]
            else:
                self.src = U(R)
        elif op.startswith(('buffer_', 'global_')):
            self.kind = 'vmem'
            self.lds = (' lds' in (' ' + mods)) or 'load_lds' in op
            if 'load' in op and not self.lds:
                self.dst = R[0]; self.src = U(R[1:])
            elif 'load' in op:
                self.src = U(R) | {('s', 124)}
            elif 'atomic' in op:
                self.src = U(R)
                if 'sc0' in mods: self.dst = R[0]
            elif 'store' in op:
                self.src = U(R)
                self.data = R[0] if op.startswith('buffer_') else R[1]
                self.wide = 'x3' in op or 'x4' in op
        elif op.startswith('s_'):
            self.kind = 'salu'
            if op.startswith(('s_cbranch', 's_branch')):
                self.target = ops[0]
            elif op.startswith(('s_cmp', 's_waitcnt', 's_barrier', 's_setprio', 's_sleep', 's_endpgm', 's_bitcmp', 's_sethalt', 's_setreg')):
                self.src = U(R)
            else:
                self.dst = R[0] if R else set(); self.src = U(R[1:])
                if 'saveexec' in op: self.dst = self.dst | {('s', 126), ('s', 127)}
        else:
            raise ValueError('unknown op ' + text)

def need(p, c):
    n = 0
    vs = lambda s: {r for r in s if r[0] != 's'}
    ss = lambda s: {r for r in s if r[0] == 's'}
    if p.kind == 'valu':
        pv = vs(p.dst); psg = ss(p.dst)
        if c.kind == 'mfma' and pv & c.src: n = max(n, 2)
        if c.kind == 'valu':
            if (c.dpp or 'permlane' in c.op) and pv & c.src: n = max(n, 2)
            if c.op.startswith(('v_readlane', 'v_readfirstlane')) and pv & c.src: n = max(n, 1)
            if p.op.startswith(TRANS) and not c.op.startswith(TRANS) and pv & c.src: n = max(n, 1)
            if psg & c.src: n = max(n, 4 if c.op.startswith(('v_readlane', 'v_writelane')) else 2)
            if ('op_sel' in p.text or 'sdwa' in p.text) and not p.op.startswith('v_pk_') and pv & (c.src | c.dst): n = max(n, 1)
        if c.kind == 'vmem' and psg & c.src: n = max(n, 5)
        if p.op.startswith(TRANS) and c.kind in ('ds', 'vmem') and pv & c.src: n = max(n, 1)
        if p.op.startswith('v_dot') and c.op != p.op and pv & (c.src | c.dst): n = max(n, 3)
    if p.kind == 'mfma':
        big = {4: 8, 8: 12}[p.passes]
        if c.kind == 'mfma':
            if p.dst & c.AB: n = max(n, big)
            if p.dst & c.C and not (p.dst == c.C and p.passes == c.passes): n = max(n, big - 2)
            if p.dst & c.dst and not (p.dst == c.C and p.passes == c.passes): n = max(n, big - 2)
        elif c.kind in ('valu', 'ds', 'vmem'):
            if p.dst & (c.src | c.dst): n = max(n, big)
            if c.kind == 'valu' and p.C & c.dst: n = max(n, big - 5)
    if p.kind == 'salu' and ('s', 124) in p.dst and c.kind == 'vmem' and c.lds: n = max(n, 1)
    if p.kind == 'vmem' and p.wide and p.data & c.dst: n = max(n, 2 if c.kind == 'valu' else 1)
    return n

MAXD = 12
class Asm:
    def __init__(self):
        self.L = []
    def __call__(self, text):
        for line in text.split('\n'):
            if line.strip() == '': continue
            self.L.append(line.strip())
    def finish(self, verbose=False):
        I = [Ins(t) for t in self.L]
        br = {}
        for x in I:
            if x.target: br.setdefault(x.target, []).append(x)
        out = []
        pos = {}
        idx_in = {id(x): i for i, x in enumerate(I)}
        nnop = 0
        def elapsed(path, c):
            occ = lambda x: 2 if 'x16_' in x.op and '16x16' in x.op else (4 if '32x32x8' in x.op else x.passes)
            t = 0; free = occ(path[0]); prev = path[0]
            for x in path[1:] + [c]:
                t += prev.states
                if x.kind == 'mfma' and x is not c:
                    t = max(t, free); free = t + occ(x)
                prev = x
            return t - 1
        def back(seq, i, dist, c, seen, path=()):
            best = 0
            path = list(path)
            while i >= 0 and dist < MAXD:
                p = seq[i]
                if p.kind == 'label':
                    for b in br.get(p.label, []):
                        key = (id(b), dist)
                        if key in seen: continue
                        seen.add(key)
                        if id(b) in pos: best = max(best, back(out, pos[id(b)], dist, c, seen, path))
                        else: best = max(best, back(I, idx_in[id(b)], dist, c, seen, path))
                    j = i - 1
                    while j >= 0 and seq[j].kind == 'none': j -= 1
                    if j >= 0 and seq[j].op in ('s_branch', 's_endpgm'): return best
                elif p.kind not in ('none',):
                    path.insert(0, p)
                    n = need(p, c)
                    if n > 0:
                        d = elapsed(path, c) if p.kind == 'mfma' else dist
                        best = max(best, n - d)
                    dist += p.states
                i -= 1
            return best
        for x in I:
            if x.kind in ('valu', 'mfma', 'ds', 'vmem'):
                k = back(out, len(out) - 1, 0, x, set())
                if k > 0:
                    out.append(Ins(f's_nop {k-1}')); nnop += 1
                    if verbose: print('nop', k, 'before', x.text)
            pos[id(x)] = len(out)
            out.append(x)
        txt = []
        for x in out:
            txt.append(x.text if x.kind in ('label', 'none') else '    ' + x.text)
        return '\n'.join(txt) + '\n'

class Cnt:
    def __init__(self, asm, name, mx):
        self.a = asm; self.name = name; self.mx = mx; self.n = 0; self.done = 0
    def issue(self, text):
        self.a(text); self.n += 1; return self.n
    def wait(self, tok):
        if tok <= self.done: return
        k = self.n - tok
        if k > self.mx: k = self.mx
        self.a(f's_waitcnt {self.name}({k})'); self.done = self.n - k
    def waitall(self, force=False):
        if force or self.done < self.n:
            self.a(f's_waitcnt {self.name}(0)')
        self.done = self.n
    def assume_clean(self): self.done = self.n
```

```python
from common import *
import math

K_OFF, M_OFF, Z_OFF, ONE_OFF, SEL_OFF, Q_OFF, KM_OFF, O_OFF = 131072, 139264, 147456, 148480, 149504, 150528, 152704, 154880
vW, vX, vQw, vQr, vO0, vO1, vO2, vO3, vRSst, vIdx, vAGst, vXw, vFl, vT0, vM, vT1 = range(16)
AQ, AK, AV, VT, QB, MEM, LS = 16, 24, 32, 40, 48, 64, 96
sC = 44
sRS0, sRS1, sRL0, sRL1, sRR, sAGs, sAGl, sAR, sT0, sT1, sCnt, sKd = range(46, 58)
sMode, sV, sFL, sPub = 60, 61, 62, 63
TSB = 64

STREAM = [('q',0,0),('q',0,1),('q',1,0),('q',1,1),
          ('k',0,0),('k',0,1),('k',1,0),('k',1,1),
          ('v',6,0),('v',6,1),('v',7,0),('v',7,1),
          ('o',2,2),('o',2,3),('o',3,2),('o',3,3)]
SLOT = {('q',0,0):0,('q',0,1):1,('q',1,0):2,('q',1,1):3,
        ('k',0,0):0,('k',0,1):1,('k',1,0):2,('k',1,1):3,
        ('v',6,0):0,('v',6,1):1,('v',7,0):0,('v',7,1):1,
        ('o',2,2):2,('o',2,3):3,('o',3,2):0,('o',3,3):1}
RES = {}
_n = 0
for mat in 'qkv':
    for c in range(8):
        for T in range(2):
            if (mat, c, T) not in SLOT: RES[(mat, c, T)] = _n; _n += 1
for i in range(4):
    for p in range(4):
        if ('o', i, p) not in SLOT: RES[('o', i, p)] = _n; _n += 1
assert _n == 48
def frag(key, slot=None):
    if key in SLOT: return vr(LS + 8 * (SLOT[key] if slot is None else slot), 8)
    n = RES[key]
    return ar(8 * n, 8) if n < 32 else vr(128 + 8 * (n - 32), 8)

def gen_chain(A, opt):
    nsteps = opt.get('nsteps', 64)
    ts = opt.get('ts', False)
    lds = Cnt(A, 'lgkmcnt', 15); vm = Cnt(A, 'vmcnt', 63)
    A('L_chain:')
    ln = 127
    A(f'''
    v_and_b32 v{ln}, 63, v0
    v_lshlrev_b32 v126, 4, v{ln}                 ; lane*16
    s_lshl_b32 s{sT0}, s{sW}, 15
    v_add_u32 v{vW}, s{sT0}, v126
    v_add_u32 v{vX}, {K_OFF}, v126
    s_lshl_b32 s{sT0}, s{sW}, 11
    s_add_u32 m0, s{sT0}, {K_OFF}
    v_add_u32 v{vXw}, s{sT0}, v{vX}
    v_lshrrev_b32 v125, 4, v{ln}                 ; g = l/16
    v_and_b32 v123, 15, v{ln}                    ; cl
    v_bfe_u32 v122, v{ln}, 2, 2                  ; cl/4
    v_and_b32 v121, 1, v{ln}
    v_lshl_add_u32 v124, v122, 1, v121           ; m(rho)
    v_bfe_u32 v120, v{ln}, 1, 1                  ; half(rho)
    v_and_b32 v118, 3, v{ln}                     ; cl_low
    ''')
    for i in range(4):
        A(f'''
        s_xor_b32 s{sT0}, s{sW}, {i}
        s_lshl_b32 s{sT0}, s{sT0}, 10
        s_add_u32 s{sT0}, s{sT0}, {O_OFF}
        v_add_u32 v{vO0 + i}, s{sT0}, v126''')
    A(f'''
    v_mul_u32_u24 v{vQw}, 544, v125
    v_lshl_add_u32 v{vQw}, v123, 2, v{vQw}
    s_lshl_b32 s{sT0}, s{sW}, 6
    s_add_u32 s{sT0}, s{sT0}, {Q_OFF}
    v_add_u32 v{vQw}, s{sT0}, v{vQw}
    v_mul_u32_u24 v{vQr}, 272, v124
    v_lshl_add_u32 v{vQr}, v125, 4, v{vQr}
    v_add_u32 v{vQr}, {Q_OFF}, v{vQr}
    v_lshlrev_b32 v{vRSst}, 13, v122
    v_lshl_add_u32 v{vRSst}, v125, 6, v{vRSst}
    v_lshl_add_u32 v{vRSst}, v118, 4, v{vRSst}
    s_lshl_b32 s{sT0}, s{sW}, 15
    s_lshl_b32 s{sT1}, s{sH}, 8
    s_add_u32 s{sT0}, s{sT0}, s{sT1}
    v_add_u32 v{vRSst}, s{sT0}, v{vRSst}
    v_mov_b32 v{vIdx}, 0x4444
    v_mov_b32 v119, 0xeeee
    v_cmp_eq_u32 vcc, 1, v120
    v_cndmask_b32 v{vIdx}, v{vIdx}, v119, vcc
    s_mov_b32 s{sC}, {f32(128 ** -0.5 * math.log2(math.e))}
    s_mov_b32 s{sC+1}, s{sC}
    ; AG store address: rho = 4(cl/4) + 2*half + g%2, + (l%2)*8 ; lanes >= 32 dropped
    v_lshlrev_b32 v{vAGst}, 6, v122
    v_lshl_add_u32 v{vAGst}, v120, 5, v{vAGst}
    v_and_b32 v119, 1, v125
    v_lshl_add_u32 v{vAGst}, v119, 4, v{vAGst}
    v_lshl_add_u32 v{vAGst}, v121, 3, v{vAGst}
    v_add_u32 v{vAGst}, s{sT1}, v{vAGst}
    v_mov_b32 v119, 0x7ffffff0
    v_cmp_lt_u32 vcc, 31, v{ln}
    v_cndmask_b32 v{vAGst}, v{vAGst}, v119, vcc
    ''')
    A(f'''
    v_mov_b64 v[16:17], -1
    v_mov_b64 v[18:19], -1
    s_lshl_b32 s{sT0}, s{sW}, 18
    s_lshl_b32 s{sT1}, s{sH}, 13
    s_add_u32 s{sT0}, s{sT0}, s{sT1}
    s_add_u32 s{sT0}, s{sT0}, {RS_BASE}
    s_add_u32 s{sT1}, s{sT0}, 4096
    ''')
    for i in range(8):
        A(f'buffer_store_dwordx4 v[16:19], v126, {srd(S_WS)}, s{sT0 if i < 4 else sT1} offen offset:{(i % 4) * 1024} sc1')
    A(f'''
    s_lshl_b32 s{sT0}, s{sW}, 13
    s_lshl_b32 s{sT1}, s{sH}, 8
    s_add_u32 s{sT0}, s{sT0}, s{sT1}
    s_add_u32 s{sT0}, s{sT0}, {AG_BASE}
    s_mov_b64 exec, 0xffff
    buffer_store_dwordx4 v[16:19], v126, {srd(S_WS)}, s{sT0} offen sc1
    s_mov_b64 exec, -1
    v_lshlrev_b32 v119, 10, v124
    v_lshl_add_u32 v119, v125, 6, v119
    v_lshl_add_u32 v119, v120, 5, v119
    s_and_b32 s{sT0}, s{sW}, 1
    s_lshl_b32 s{sT0}, s{sT0}, 9
    s_lshr_b32 s{sT1}, s{sW}, 1
    s_lshl_b32 s{sT1}, s{sT1}, 3
    s_add_u32 s{sT0}, s{sT0}, s{sT1}
    ''')
    for cc in range(2):
        for hf in range(2):
            A(f'buffer_load_dwordx2 {vr(20 + 4 * cc + 2 * hf, 2)}, v119, {srd(S_M0)}, s{sT0} offen offset:{cc * 256 + 16 * hf}')
    A(f'''
    v_mov_b64 v[28:29], 0
    v_mov_b64 v[30:31], 0
    ds_write_b128 v{vX}, v[28:31] offset:{Z_OFF - K_OFF}
    v_mov_b32 v32, 0x3f803f80
    v_mov_b32 v33, v32
    v_mov_b32 v34, v32
    v_mov_b32 v35, v32
    ds_write_b128 v{vX}, v[32:35] offset:{ONE_OFF - K_OFF}
    v_bfe_u32 v36, v{ln}, 1, 2
    v_lshlrev_b32 v37, 4, v121
    v_mov_b32 v38, 0x3f80
    v_lshlrev_b32 v37, v37, v38
    ''')
    for d in range(4):
        A(f'v_cmp_eq_u32 vcc, {d}, v36')
        A(f'v_cndmask_b32 v{40 + d}, 0, v37, vcc')
    A(f'ds_write_b128 v{vX}, v[40:43] offset:{SEL_OFF - K_OFF}')
    A('s_waitcnt vmcnt(0)')
    A(f'ds_write_b128 v{vXw}, v[20:23] offset:{M_OFF - K_OFF}')
    A(f'ds_write_b128 v{vXw}, v[24:27] offset:{M_OFF - K_OFF + 1024}')
    A('s_waitcnt lgkmcnt(0)')
    A('s_barrier')
    A(f's_cmp_lg_u32 s{sW}, 0\ns_cbranch_scc1 L_ch_noinit')
    signal_init(A, 16, 17, sT0)
    A('L_ch_noinit:')
    A(f'''
    v_lshrrev_b32 v119, 1, v125
    v_lshlrev_b32 v119, 18, v119
    v_and_b32 v118, 1, v125
    v_lshl_add_u32 v119, v118, 16, v119          ; 8*(gb%2) rows
    v_lshl_add_u32 v119, v123, 2, v119
    s_lshl_b32 s{sT0}, s{sW}, 6
    s_lshl_b32 s{sT1}, s{sH}, 8
    s_add_u32 s{sT0}, s{sT0}, s{sT1}
    v_add_u32 v12, s{sT0}, v119
    v_lshlrev_b32 v119, 12, v125
    v_lshl_add_u32 v119, v123, 4, v119
    s_lshl_b32 s{sT0}, s{sW}, 8
    s_lshl_b32 s{sT1}, s{sH}, 17
    s_add_u32 s{sT0}, s{sT0}, s{sT1}
    v_add_u32 v13, s{sT0}, v119
    s_mov_b32 s58, 0x05040100
    s_mov_b32 s59, 0x07060302
    ''')
    vm.n += 1; lds.assume_clean()
    jobs = []
    for i in range(4):
        for uh in range(2): jobs.append(('o', i, uh))
    for mat in 'qkv':
        for c in range(8): jobs.append((mat, c, 0))
    NB = 5; STG = 32; TMP = 16
    toks = {}
    def issue(n):
        mat, c, uh = jobs[n]; b0 = STG + 16 * (n % NB)
        if mat == 'o':
            A(f's_xor_b32 s{sT0}, s{sW}, {c}')
            A(f's_lshl_b32 s{sT0}, s{sT0}, 15')
            if uh: A(f's_add_u32 s{sT0}, s{sT0}, {16 * 1024}')
            for q in range(4):
                toks[n] = vm.issue(f'buffer_load_dwordx4 {vr(b0 + 4 * q, 4)}, v13, {srd(S_WO)}, s{sT0} offen offset:{q * 1024}')
        else:
            S = {'q': S_WQ, 'k': S_WK, 'v': S_WV}[mat]
            for t in range(8):
                for b in range(2):
                    R = 128 * (c % 4) + 4 * (c // 4) + 64 * (t >> 2) + 16 * (t & 1) + 2 * ((t >> 1) & 1) + b
                    A(f's_mov_b32 s{sT0}, {R * 8192}')
                    toks[n] = vm.issue(f'buffer_load_dword v{b0 + 2 * t + b}, v12, {srd(S)}, s{sT0} offen')
    def put(key, t, lo, hi, sel, tmpi):
        if key in SLOT or RES[key] < 32:
            A(f'v_perm_b32 v{TMP + tmpi}, v{hi}, v{lo}, s{sel}')
            if key not in SLOT: A(f'v_accvgpr_write_b32 a{8 * RES[key] + t}, v{TMP + tmpi}')
        else:
            A(f'v_perm_b32 v{128 + 8 * (RES[key] - 32) + t}, v{hi}, v{lo}, s{sel}')
    def consume(n):
        mat, c, uh = jobs[n]; b0 = STG + 16 * (n % NB)
        vm.wait(toks[n])
        lds.waitall()
        if mat == 'o':
            for p in range(4):
                for ul in range(2):
                    for half in range(2):
                        put(('o', c, p), 4 * uh + 2 * ul + half, b0 + 8 * ul + p, b0 + 8 * ul + 4 + p, 58 + half, 4 * p + 2 * ul + half)
                if ('o', c, p) in SLOT:
                    lds.issue(f"ds_write_b128 v{vW}, {vr(TMP + 4 * p, 4)} offset:{STREAM.index(('o', c, p)) * 2048 + uh * 1024}")
        else:
            for T in range(2):
                for t in range(8): put((mat, c, T), t, b0 + 2 * t, b0 + 2 * t + 1, 58 + T, 8 * T + t)
                if (mat, c, T) in SLOT:
                    for hf in range(2):
                        lds.issue(f'ds_write_b128 v{vW}, {vr(TMP + 8 * T + 4 * hf, 4)} offset:{STREAM.index((mat, c, T)) * 2048 + hf * 1024}')
    for n in range(len(jobs) + NB - 1):
        if n < len(jobs): issue(n)
        if n >= NB - 1: consume(n - NB + 1)
    lds.waitall(); vm.waitall(True)
    def srd_txt(key, hf, slot=None):
        sl = SLOT[key] if slot is None else slot
        return f'ds_read_b128 {vr(LS + 8 * sl + 4 * hf, 4)}, v{vW} offset:{STREAM.index(key) * 2048 + hf * 1024}'
    wait_init(A, 'L_ch_wi', ln, 18, 16, sCnt)
    A(f'''
    v_readfirstlane_b32 s{sMode}, v16
    s_mov_b32 s{sS}, 0
    s_lshl_b32 s{sFL}, s{sH}, 6
    s_add_u32 s{sFL}, s{sFL}, {FL_BASE}
    s_mov_b32 s{sCnt}, 0
    L_ch_wf:
    buffer_load_dword v16, off, {srd(S_WS)}, s{sFL} sc1
    buffer_load_dword v17, off, {srd(S_WS)}, s{sFL} offset:2048 sc1
    s_add_u32 s{sCnt}, s{sCnt}, 1
    s_cmp_gt_u32 s{sCnt}, {SPIN}
    s_cbranch_scc1 L_end
    s_waitcnt vmcnt(0)
    v_min_u32 v16, v16, v17
    v_cmp_eq_u32 vcc, 0, v16
    s_cbranch_vccnz L_ch_wf
    s_add_u32 s{sFL}, s{sFL}, 4096
    s_lshl_b32 s{sKd}, s{sH}, 14
    s_lshl_b32 s{sT0}, s{sW}, 11
    s_add_u32 s{sKd}, s{sKd}, s{sT0}
    s_add_u32 s{sKd}, s{sKd}, {KV_BASE - K_OFF}
    buffer_load_dwordx4 v{vX}, {srd(S_WS)}, s{sKd} offen sc1 lds
    buffer_load_dwordx4 v{vX}, {srd(S_WS)}, s{sKd} offen offset:1024 sc1 lds
    s_add_u32 s{sV}, s{sKd}, 8192
    s_add_u32 s{sKd}, s{sKd}, {32 * 16384}
    s_lshl_b32 s{sPub}, s{sH}, 12
    s_lshl_b32 s{sT0}, s{sW}, 10
    s_add_u32 s{sPub}, s{sPub}, s{sT0}
    s_add_u32 s{sPub}, s{sPub}, {KVM_BASE - K_OFF}
    s_mov_b32 s{sRS0}, {RS_BASE}
    s_mov_b32 s{sRS1}, {RS_BASE + 16 * 8192}
    s_lshl_b32 s{sRL0}, s{sH}, 13
    s_add_u32 s{sRL0}, s{sRL0}, {RS_BASE + 3 * 262144 - K_OFF}
    s_lshl_b32 s{sAR}, s{sH}, 8
    s_add_u32 s{sAR}, s{sAR}, {AG_BASE + 3 * 8192 - K_OFF}
    v_mov_b64 {vr(VT, 2)}, -1
    v_mov_b64 {vr(VT + 2, 2)}, -1
    ''')
    for key in STREAM[0:4]:
        for hf in range(2): A(srd_txt(key, hf))
    for r in range(0, 24, 2): A(f'v_mov_b64 {vr(AQ + r, 2)}, 0')
    A('s_waitcnt vmcnt(0)')
    if ts: A(f's_memrealtime s[98:99]\ns_memtime s[96:97]')
    modes = [('f', '')] + ([] if opt.get('nofallback') else [('s', ' sc1')])
    if len(modes) > 1:
        A(f"s_cmp_lg_u32 s{sMode}, {'-2' if opt.get('force_slow') else '-1'}\ns_cbranch_scc1 L_step_s")
    for sfx, SC in modes: gen_loop(A, opt, sfx, SC, nsteps, ts, srd_txt)
    lds = Cnt(A, 'lgkmcnt', 15)
    A('L_ch_last:\ns_waitcnt lgkmcnt(0)\ns_barrier')
    mt = [lds.issue(f'ds_read_b128 {vr(MEM + 4 * c, 4)}, v{vX} offset:{M_OFF - K_OFF + 1024 * c}') for c in range(8)]
    for key in STREAM[4:8]:
        for hf in range(2): kt = lds.issue(srd_txt(key, hf))
    smf = lambda acc, a, key, slot=None: A(f'v_smfmac_f32_16x16x64_bf16 {vr(acc, 4)}, {vr(a, 4)}, {frag(key, slot)}, v{vIdx}')
    for c in range(6):
        lds.wait(mt[c])
        for T in range(2): smf(AV + 4 * T, MEM + 4 * c, ('v', c, T))
    lds.wait(kt)
    for c in range(8):
        for T in range(2): smf(AK + 4 * T, MEM + 4 * c, ('k', c, T))
        if c == 1:
            for j, key in enumerate(STREAM[8:12]):
                for hf in range(2): lds.issue(srd_txt(key, hf, j))
    lds.waitall()
    for j, key in enumerate(STREAM[8:12]): smf(AV + 4 * key[2], MEM + 4 * key[1], key, j)
    A(f'''
    v_pk_add_f32 {vr(AK, 2)}, {vr(AK, 2)}, {vr(AK + 2, 2)}
    v_pk_add_f32 {vr(AK + 4, 2)}, {vr(AK + 4, 2)}, {vr(AK + 6, 2)}
    v_cvt_pk_bf16_f32 v{AK}, v{AK}, v{AK + 4}
    v_cvt_pk_bf16_f32 v{AK + 1}, v{AK + 1}, v{AK + 5}
    v_pk_add_f32 {vr(AV, 2)}, {vr(AV, 2)}, {vr(AV + 2, 2)}
    v_pk_add_f32 {vr(AV + 4, 2)}, {vr(AV + 4, 2)}, {vr(AV + 6, 2)}
    v_cvt_pk_bf16_f32 v{AK + 2}, v{AV}, v{AV + 1}
    v_cvt_pk_bf16_f32 v{AK + 3}, v{AV + 4}, v{AV + 5}
    buffer_store_dwordx4 {vr(AK, 4)}, v{vX}, {srd(S_WS)}, s{sPub} offen sc1
    ''')
    if ts:
        A(f'''
        s_memrealtime s[64:65]
        s_memtime s[66:67]
        s_waitcnt lgkmcnt(0)
        s_sub_u32 s64, s64, s98
        s_sub_u32 s66, s66, s96
        v_mov_b32 v16, s64
        v_mov_b32 v17, s66
        v_mov_b32 v18, s98
        s_lshl_b32 s{sT0}, s{sH}, 6
        s_add_u32 s{sT0}, s{sT0}, {TS_BASE + 63 * 32 * 64}
        buffer_store_dwordx3 v[16:18], off, {srd(S_WS)}, s{sT0}
        ''')
    A('s_waitcnt vmcnt(0)\ns_branch L_end')

def gen_loop(A, opt, sfx, SC, nsteps, ts, srd_txt):
    lds = Cnt(A, 'lgkmcnt', 15); vm = Cnt(A, 'vmcnt', 63)
    nst = [0]
    def stamp():
        if ts: A(f's_memtime s[{TSB + 2 * nst[0]}:{TSB + 1 + 2 * nst[0]}]'); nst[0] += 1
    tok = {}
    def emit(x):
        if isinstance(x, str): A(x)
        elif x[0] == 'L': tok[x[1]] = lds.issue(x[2])
        elif x[0] == 'V': tok[x[1]] = vm.issue(x[2])
        elif x[0] == 'WL': lds.wait(tok[x[1]])
        elif x[0] == 'WV': vm.wait(tok[x[1]])
        elif x[0] == 'TS': stamp()
    def run(seq):
        for x in seq: emit(x)
    def smf(acc, a, key): return f'v_smfmac_f32_16x16x64_bf16 {vr(acc, 4)}, {vr(a, 4)}, {frag(key)}, v{vIdx}'
    def mf32(d, a, b, c): return f"v_mfma_f32_16x16x32_bf16 {vr(d, 4)}, {vr(a, 4)}, {vr(b, 4)}, {'0' if c is None else vr(c, 4)}"
    def mf16(d, a, b, c): return f"v_mfma_f32_16x16x16_bf16 {vr(d, 4)}, {vr(a, 2)}, {vr(b, 2)}, {'0' if c is None else vr(c, 4)}"
    def sr(key): return [('L', (key, hf), srd_txt(key, hf)) for hf in range(2)]
    def weave(ms, fills):
        run(fills.get(-1, []))
        for i, m in enumerate(ms):
            emit(m); run(fills.get(i, []))
    pka = lambda a: f'v_pk_add_f32 {vr(a, 2)}, {vr(a, 2)}, {vr(a + 2, 2)}'
    cvt = lambda d, a, b: f'v_cvt_pk_bf16_f32 v{d}, v{a}, v{b}'
    rd = lambda name, d, va, off: ('L', name, f'ds_read_b128 {vr(d, 4)}, v{va} offset:{off}')

    A(f'L_step_{sfx}:')
    A('s_waitcnt lgkmcnt(0)')
    A('s_barrier')
    stamp()
    run([rd(('m', c), MEM + 4 * c, vX, M_OFF - K_OFF + 1024 * c) for c in range(8)])
    nokv = opt.get('nokv')
    PK = VT
    def resets(track):
        R_ = [f'buffer_store_dwordx4 {vr(PK, 4)}, v{vXw}, {srd(S_WS)}, s{sRL0} offen offset:{i * 1024}{SC}' for i in range(2)]
        R_ += [f'buffer_store_dwordx4 {vr(PK, 4)}, v{vX}, {srd(S_WS)}, s{sAR} offen{SC}']
        for i, r in enumerate(R_):
            if i == 2: A('s_mov_b64 exec, 15')
            if track: vm.issue(r)
            else: A(r)
        A('s_mov_b64 exec, -1')
    rl = opt.get('rlate', 1)
    if rl: resets(True)
    if not nokv:
        run([('V', 'fl', f'buffer_load_dword v{vFl}, off, {srd(S_WS)}, s{sFL} sc1')])
        run([('V', ('vt', T), f'buffer_load_dwordx4 {vr(VT + 4 * T, 4)}, v{vX}, {srd(S_WS)}, s{sV} offen offset:{1024 * T} sc1') for T in range(2)])
    ks_ = [x for key in STREAM[4:8] for x in sr(key)]
    weave([smf(AQ + 4 * T, MEM + 4 * c, ('q', c, T)) for c in range(8) for T in range(2)],
          {-1: [('WL', ('m', 0))], 1: [('WL', ('m', 2))], 2: ks_[0:2], 3: ks_[2:4], 4: ks_[4:6], 5: [('WL', ('m', 7))], 6: ks_[6:8],
           15: [('WL', (STREAM[7], 1))]})
    KR = [rd(('K', j), LS + 4 * j, vX, 1024 * j) for j in range(8)]
    QR = [rd(('q', j), QB + 4 * j, vQr, 64 * j) for j in range(4)]
    weave([smf(AK + 4 * T, MEM + 4 * c, ('k', c, T)) for c in range(8) for T in range(2)],
          {1: [KR[0], pka(AQ)], 2: [KR[1], pka(AQ + 4)], 3: [KR[2], cvt(AQ, AQ, AQ + 4)], 4: [KR[3], cvt(AQ + 1, AQ + 1, AQ + 5)],
           5: [('L', 'qw', f'ds_write2_b32 v{vQw}, v{AQ}, v{AQ + 1} offset0:0 offset1:68')],
           6: KR[4:6], 7: KR[6:8], 8: [f'v_add_u32 v{vT0}, {KM_OFF - Q_OFF}, v{vQw}'],
           9: [('WL', 'qw'), 's_barrier'], 10: QR[0:2], 11: QR[2:4], 15: [('WL', ('q', 1))]})
    stamp()
    S = AQ; SM = AK + 4
    v6 = sr(('v', 6, 0)) + sr(('v', 6, 1)); v7 = sr(('v', 7, 0)) + sr(('v', 7, 1))
    weave([mf32(S + 4 * kt, LS + 8 * ks + 4 * kt, QB + 4 * ks, None if ks == 0 else S + 4 * kt) for ks in range(4) for kt in range(2)],
          {1: [pka(AK), pka(AK + 4)], 2: [cvt(AK, AK, AK + 4), cvt(AK + 1, AK + 1, AK + 5)],
           3: [('L', 'kw', f'ds_write2_b32 v{vT0}, v{AK}, v{AK + 1} offset0:0 offset1:68'), ('WL', ('q', 3))],
           4: v6[0:2], 5: v6[2:4], 7: [('WL', 'kw'), 's_barrier']})
    KA = LS + 16
    KAR = [rd(('ka', j), KA + 4 * j, vQr, KM_OFF - Q_OFF + 64 * j) for j in range(4)]
    dma = [] if nokv else [('V', ('kd', j), f'buffer_load_dwordx4 v{vX}, {srd(S_WS)}, s{sKd} offen offset:{1024 * j} sc1 lds') for j in range(2)]
    vmf = lambda c, T: smf(AV + 4 * T, MEM + 4 * c, ('v', c, T))
    ONE = MEM; OT = MEM + 4; L = MEM + 12; OA = MEM + 16; AO = QB
    o2 = sr(('o', 2, 2)) + sr(('o', 2, 3)); o3 = sr(('o', 3, 2)) + sr(('o', 3, 3))
    ZR = [rd(('z', j), AO + 4 * j, vX, Z_OFF - K_OFF) for j in range(4)]
    pkf = lambda a: f'v_pk_fma_f32 {vr(a, 2)}, {vr(a, 2)}, s[{sC}:{sC+1}], {vr(vM, 2)} op_sel_hi:[1,1,0] neg_lo:[0,0,1] neg_hi:[0,0,1]'
    ex = lambda a: f'v_exp_f32 v{a}, v{a}'
    weave([vmf(0, 0), vmf(0, 1), vmf(6, 0), vmf(6, 1), vmf(1, 0)] +
          [mf32(SM, KA + 4 * ks, QB + 4 * ks, None if ks == 0 else SM) for ks in range(4)] +
          [vmf(1, 1), vmf(2, 0), vmf(2, 1), vmf(7, 0), vmf(7, 1), vmf(3, 0), vmf(3, 1), vmf(4, 0), vmf(4, 1), vmf(5, 0), vmf(5, 1)],
          {-1: KAR[0:2], 0: KAR[2:4], 1: [('WL', (('v', 6, 1), 1)), f'v_max3_f32 v{vM}, v{S}, v{S+1}, v{S+2}'],
           2: dma[0:1] + [f'v_max3_f32 v{vT0}, v{S+3}, v{S+4}, v{S+5}'],
           3: dma[1:2] + [f'v_max3_f32 v{vM}, v{vM}, v{S+6}, v{S+7}'],
           4: [('WL', ('ka', 3)), f'v_max_f32 v{vM}, v{vM}, v{vT0}'],
           5: v7[0:2], 6: v7[2:4], 7: [rd('one', ONE, vX, ONE_OFF - K_OFF)], 8: [('TS',)],
           9: o2[0:2],
           10: o2[2:3] + [f'v_max3_f32 v{vM}, v{vM}, v{SM}, v{SM+1}', f'v_mov_b32 v{vT0}, v{vM}'],
           11: [('WL', (('v', 7, 1), 1)), f'v_permlane16_swap_b32 v{vM}, v{vT0}', f'v_max_f32 v{vM}, v{vM}, v{vT0}', f'v_mov_b32 v{vT0}, v{vM}'],
           12: o2[3:4] + [f'v_permlane32_swap_b32 v{vM}, v{vT0}', f'v_max_f32 v{vM}, v{vM}, v{vT0}', f'v_mul_f32 v{vM}, s{sC}, v{vM}',
                pkf(S), pkf(S + 2), ex(S)],
           13: ZR[0:1] + [pkf(S + 4), pkf(S + 6), pkf(SM), ex(S + 1)],
           14: o3[0:1] + [ex(S + 2), ex(S + 3)],
           15: o3[1:2] + [ex(S + 4), cvt(S, S, S + 1), cvt(S + 1, S + 2, S + 3)],
           16: o3[2:3] + [ex(S + 5), ex(S + 6)],
           17: o3[3:4] + [ex(S + 7), cvt(S + 2, S + 4, S + 5)],
           18: ZR[1:2] + [ex(SM), cvt(S + 3, S + 6, S + 7)],
           19: ZR[2:4] + [ex(SM + 1), f'v_mov_b32 v{SM + 2}, 0']})
    stamp()
    VA = AK + 2
    pkm = lambda a: f'v_pk_mul_f32 {vr(a, 2)}, {vr(a, 2)}, {vr(vM, 2)} op_sel_hi:[1,0]'
    weave([mf32(L, ONE, S, None), mf32(OT, VT, S, None), mf16(L, ONE, SM, L), mf32(OT + 4, VT + 4, S, None),
           mf16(OT, VA, SM, OT), mf16(OT + 4, VA, SM + 2, OT + 4)],
          {-1: [('WL', 'one')],
           0: ([] if nokv else [('WV', ('vt', 1))]) + [cvt(SM + 3, SM, SM + 1), cvt(SM, SM, SM + 1), f'v_mov_b32 v{SM + 1}, 0'],
           1: [pka(AV), pka(AV + 4)],
           2: [cvt(VA, AV, AV + 1), cvt(VA + 1, AV + 4, AV + 5)],
           5: ([] if opt.get('nopub') else [('V', 'pub', f'buffer_store_dwordx4 {vr(AK, 4)}, v{vX}, {srd(S_WS)}, s{sPub} offen sc1')]) +
              [f'v_rcp_f32 v{vM}, v{L}', f's_cmp_lg_u32 s{sW}, 0', pkm(OT), pkm(OT + 2), pkm(OT + 4), cvt(OA, OT, OT + 4), cvt(OA + 1, OT + 1, OT + 5), pkm(OT + 6),
               cvt(OA + 2, OT + 2, OT + 6), cvt(OA + 3, OT + 3, OT + 7),
               ('L', 'ow', f'ds_write_b128 v{vO0}, {vr(OA, 4)}'), ('WL', ('z', 3))]})
    stamp()
    omf = lambda i, p: smf(AO + 4 * p, OA + 4 * i, ('o', i, p))
    PK = VT
    def pack(pg):
        a = AO + 8 * pg; d = PK + 4 * pg
        return [cvt(d, a, a + 2), cvt(d + 2, a + 1, a + 3), cvt(d + 1, a + 4, a + 6), cvt(d + 3, a + 5, a + 7),
                ('V', ('rs', pg), f'buffer_store_dwordx4 {vr(d, 4)}, v{vRSst}, {srd(S_WS)}, s{(sRS0, sRS1)[pg]} offen{SC}')]
    p0 = pack(0); p1 = pack(1)
    nb = opt.get('own_before', 3)
    OR_ = [rd(('o', i), OA + 4 * i, vO0 + i, 0) for i in range(1, 4)]
    SEL = QB + 8; D = QB + 12
    weave([omf(0, p) for p in range(4)] + [omf(i, p) for i in range(1, 4) for p in range(2)] + [omf(i, 2) for i in range(1, 4)] + [omf(i, 3) for i in range(1, 4)],
          {nb - 1: [('WL', 'ow'), 's_barrier'] + OR_, 3: [] if nb == 4 else [('WL', ('o', 1))], 5: [('WL', ('o', 3))],
           11: p0[0:2], 12: p0[2:4], 13: p0[4:5], 14: p1[0:2]} if nb != 4 else {})
    qs = [x for key in STREAM[0:4] for x in sr(key)]
    run(qs[4:8] + qs[0:2])
    run(p1[2:5])
    stamp()
    def delay(n):
        while n > 0:
            k = min(n, 16); A(f's_nop {k - 1}'); n -= k
    def idle_work():
        for r in range(0, 24, 2): A(f'v_mov_b64 {vr(AQ + r, 2)}, 0')
        A(f'v_mov_b64 {vr(PK, 2)}, -1\nv_mov_b64 {vr(PK + 2, 2)}, -1')
        A(f'''
        s_and_b32 s{sT0}, s{sS}, 3
        s_lshl_b32 s{sAGs}, s{sT0}, 13
        s_add_u32 s{sAGs}, s{sAGs}, {AG_BASE}
        s_sub_u32 s{sAGl}, s{sAGs}, {K_OFF}
        s_add_u32 s{sT0}, s{sS}, 3
        s_and_b32 s{sT0}, s{sT0}, 3
        s_lshl_b32 s{sT0}, s{sT0}, 5
        s_add_u32 s{sT0}, s{sT0}, s{sH}
        s_lshl_b32 s{sT0}, s{sT0}, 2
        s_add_u32 s{sT0}, s{sT0}, s{sW}
        s_lshl_b32 s{sT0}, s{sT0}, 6
        s_add_u32 s{sAR}, s{sT0}, {AG_BASE - K_OFF}
        s_add_u32 s{sS}, s{sS}, 1
        s_and_b32 s{sT0}, s{sS}, 3
        s_lshl_b32 s{sT0}, s{sT0}, 18
        s_add_u32 s{sRS0}, s{sT0}, {RS_BASE}
        s_add_u32 s{sRS1}, s{sRS0}, {16 * 8192}
        s_add_u32 s{sV}, s{sV}, {32 * 16384}
        s_add_u32 s{sKd}, s{sKd}, {32 * 16384}
        s_add_u32 s{sPub}, s{sPub}, {32 * 4096}
        ''')
    A(f's_cbranch_scc1 L_oth_{sfx}')
    run(qs[2:4] + [rd('sel', SEL, vX, SEL_OFF - K_OFF)])
    A(f'''
    s_lshl_b32 s{sRL0}, s{sH}, 13
    s_add_u32 s{sRL0}, s{sRL0}, s{sRS0}
    s_sub_u32 s{sRL0}, s{sRL0}, {K_OFF}
    s_add_u32 s{sRL1}, s{sRL0}, 4096
    s_mov_b32 s{sCnt}, 0
    ''')
    delay(opt.get('d1', 0))
    def rs_issue():
        for i in range(8):
            A(f'buffer_load_dwordx4 {vr(MEM + 4 * i, 4)}, v{vX}, {srd(S_WS)}, s{sRL0 if i < 4 else sRL1} offen offset:{(i % 4) * 1024} sc1')
    rs_issue()
    idle_work()
    A(f's_cmp_lt_u32 s{sS}, 62\ns_cselect_b32 s{sT0}, 2048, 0\ns_add_u32 s{sFL}, s{sFL}, s{sT0}')
    A('s_waitcnt lgkmcnt(0)')
    A(f'L_rs_chk_{sfx}:')
    for i in range(8):
        b = MEM + 4 * i
        A(f's_waitcnt vmcnt({7 - i})')
        A(mf32(D, SEL, b, None if i == 0 else D))
        if i == 0: A(f'v_max3_u32 v{vT0}, v{b}, v{b + 1}, v{b + 2}\nv_max_u32 v{vT0}, v{vT0}, v{b + 3}')
        else: A(f'v_max3_u32 v{vT0}, v{vT0}, v{b}, v{b + 1}\nv_max3_u32 v{vT0}, v{vT0}, v{b + 2}, v{b + 3}')
    A(f'''
    v_cmp_eq_u32 vcc, -1, v{vT0}
    s_cbranch_vccnz L_rs_retry_{sfx}
    v_cvt_pk_bf16_f32 v{D}, v{D}, v{D + 1}
    v_cvt_pk_bf16_f32 v{D + 1}, v{D + 2}, v{D + 3}
    buffer_store_dwordx2 {vr(D, 2)}, v{vAGst}, {srd(S_WS)}, s{sAGs} offen{SC}
    ''')
    if ts: A(f's_mov_b32 s94, s{sCnt}')
    A(f'L_ag_{sfx}:')
    A('s_barrier')
    stamp()
    A(f's_mov_b32 s{sCnt}, 0')
    delay(opt.get('d2', 0))
    G = QB
    def ag_issue():
        for i in range(2): A(f'buffer_load_dwordx4 {vr(G + 4 * i, 4)}, v{vXw}, {srd(S_WS)}, s{sAGl} offen offset:{i * 1024} sc1')
    def ag_check(n, first=False):
        A(f'''
        s_waitcnt vmcnt({n + 1})
        {'s_memtime s[90:91]' if ts and first else ''}
        ds_write_b128 v{vXw}, {vr(G, 4)} offset:{M_OFF - K_OFF}
        v_max3_u32 v{vT0}, v{G}, v{G + 1}, v{G + 2}
        s_waitcnt vmcnt({n})
        ds_write_b128 v{vXw}, {vr(G + 4, 4)} offset:{M_OFF - K_OFF + 1024}
        v_max3_u32 v{vT0}, v{vT0}, v{G + 3}, v{G + 4}
        v_max3_u32 v{vT0}, v{vT0}, v{G + 5}, v{G + 6}
        v_max_u32 v{vT0}, v{vT0}, v{G + 7}
        v_cmp_eq_u32 vcc, -1, v{vT0}
        ''')
    ag_issue()
    if not rl: resets(False)
    ag_check(0 if rl else 3, True)
    A(f's_cbranch_vccnz L_ag_retry_{sfx}')
    A(f'L_ag_ok_{sfx}:')
    if ts:
        stamp()
        A(f's_mov_b32 s95, s{sCnt}\ns_waitcnt lgkmcnt(0)')
        A(f"s_cmp_lg_u32 s{sW}, {opt.get('tsw', 0)}\ns_cbranch_scc1 L_nots_{sfx}")
        for i in range(nst[0]): A(f'v_writelane_b32 v{MEM}, s{TSB + 2 * i}, {i}')
        A(f'v_writelane_b32 v{MEM}, s94, 14\nv_writelane_b32 v{MEM}, s95, 15\nv_writelane_b32 v{MEM}, s92, 13\nv_writelane_b32 v{MEM}, s90, 12')
        A(f'''
        s_sub_u32 s{sT0}, s{sS}, 1
        s_lshl_b32 s{sT0}, s{sT0}, 5
        s_add_u32 s{sT0}, s{sT0}, s{sH}
        s_lshl_b32 s{sT0}, s{sT0}, 6
        s_add_u32 s{sT0}, s{sT0}, {TS_BASE - K_OFF // 4}
        v_lshrrev_b32 v{MEM + 1}, 2, v{vX}
        s_mov_b64 exec, 0xffff
        buffer_store_dword v{MEM}, v{MEM + 1}, {srd(S_WS)}, s{sT0} offen
        s_mov_b64 exec, -1
        s_nop 4
        L_nots_{sfx}:
        ''')
    A(f'''
    s_cmp_lt_u32 s{sS}, {nsteps - 1}
    s_cbranch_scc1 L_step_{sfx}
    s_branch L_ch_last
    L_rs_retry_{sfx}:
    ''')
    rs_issue()
    A(f'''
    s_add_u32 s{sCnt}, s{sCnt}, 1
    s_cmp_lt_u32 s{sCnt}, {SPIN}
    s_cbranch_scc1 L_rs_chk_{sfx}
    s_branch L_end
    L_ag_retry_{sfx}:
    s_waitcnt lgkmcnt(0)
    ''')
    ag_issue()
    A(f'''
    s_add_u32 s{sCnt}, s{sCnt}, 1
    s_cmp_gt_u32 s{sCnt}, {SPIN}
    s_cbranch_scc1 L_end
    ''')
    ag_check(0)
    A(f'''
    s_cbranch_vccnz L_ag_retry_{sfx}
    s_branch L_ag_ok_{sfx}
    L_oth_{sfx}:
    ''')
    if ts: A('s_waitcnt vmcnt(0)\ns_memtime s[92:93]')
    run(qs[2:4])
    A(f'''
    s_lshl_b32 s{sRL0}, s{sH}, 13
    s_add_u32 s{sRL0}, s{sRL0}, s{sRS0}
    s_sub_u32 s{sRL0}, s{sRL0}, {K_OFF}
    s_mov_b32 s{sCnt}, 0
    ''')
    idle_work()
    if not nokv:
        A(f'''
        L_fl_{sfx}:
        v_cmp_ne_u32 vcc, 0, v{vFl}
        s_cbranch_vccnz L_fl_ok_{sfx}
        buffer_load_dword v{vFl}, off, {srd(S_WS)}, s{sFL} sc1
        s_add_u32 s{sCnt}, s{sCnt}, 1
        s_cmp_gt_u32 s{sCnt}, {SPIN}
        s_cbranch_scc1 L_end
        s_waitcnt vmcnt(0)
        s_branch L_fl_{sfx}
        L_fl_ok_{sfx}:
        ''')
    A(f's_cmp_lt_u32 s{sS}, 62\ns_cselect_b32 s{sT0}, 2048, 0\ns_add_u32 s{sFL}, s{sFL}, s{sT0}')
    A(f's_branch L_ag_{sfx}')
```

```python
from asmgen import *
import struct
NAME = "parallel_sum__memory_aug_recurrent_mem_tr__geglu_ffn__prompt"
AG_BASE   = 0x080000
FL_BASE   = 0x0A0000
TS_BASE   = 0x0D0000
XN_BASE   = 0x200000
RS_BASE   = 0x100000
KVM_BASE  = 0x800000
KV_BASE   = 0x1000000
QH_BASE   = 0x3000000
PART_BASE = 0x5000000
TW_BASE   = 0x0F0000
WS_BYTES  = 0x10000000
DBG_TICKET = 0
DBG_BITS   = 128
DBG_OVF    = 192
S_WS, S_WQ, S_WK, S_WV, S_WO, S_M0, S_X = 8, 12, 16, 20, 24, 28, 32
S_WG, S_WU, S_WD, S_OUT = 80, 84, 88, 92
S_DBG = 36
sSlot, sOvf = 38, 39
sH, sW, sS = 40, 41, 42
def srd(b): return f"s[{b}:{b+3}]"
def vr(b, n=1): return f"v{b}" if n == 1 else f"v[{b}:{b+n-1}]"
def ar(b, n=1): return f"a{b}" if n == 1 else f"a[{b}:{b+n-1}]"
def f32(x): return hex(struct.unpack('<I', struct.pack('<f', x))[0])
SPIN = 400000

def signal_init(A, va, vb, st):
    A(f'''
    s_lshr_b32 s{st}, s{sSlot}, 5
    s_lshl_b32 s{st}, s{st}, 1
    s_add_u32 s{st}, s{st}, s{sOvf}
    s_lshl_b32 s{st}, s{st}, 2
    v_mov_b32 v{va}, s{st}
    s_and_b32 s{st}, s{sSlot}, 31
    s_lshl_b32 s{st}, 1, s{st}
    v_mov_b32 v{vb}, s{st}
    s_mov_b64 exec, 1
    global_atomic_or v{va}, v{vb}, s[{S_DBG}:{S_DBG+1}] offset:{DBG_BITS} sc1
    s_mov_b64 exec, -1
    ''')

def wait_init(A, lab, vlane, va, vb, scnt):
    A(f'''
    v_and_b32 v{va}, 7, v{vlane}
    v_lshlrev_b32 v{va}, 3, v{va}
    s_mov_b32 s{scnt}, 0
    {lab}:
    global_load_dwordx2 v[{vb}:{vb+1}], v{va}, s[{S_DBG}:{S_DBG+1}] offset:{DBG_BITS} sc1
    s_add_u32 s{scnt}, s{scnt}, 1
    s_cmp_gt_u32 s{scnt}, {SPIN}
    s_cbranch_scc1 L_end
    s_waitcnt vmcnt(0)
    v_or_b32 v{vb+1}, v{vb}, v{vb+1}
    v_cmp_ne_u32 vcc, -1, v{vb+1}
    s_cbranch_vccnz {lab}
    ''')
```

```python
from common import *
import math

vL16, vKa, vVa, vMa, vXa, vOne, vWa, vT0, vT1, vT2, vPo, vRa, vOa, vKw, vKr, vXr = range(0, 16)
sG, sN, sIt, sPass, sT0, sT1, sCnt = 43, 44, 45, 46, 47, 48, 49
sJ = 50
sP0, sP1 = 58, 59
S_W = 60
sE = 64
sBuf, sBufD, sXn, sDst, sDst2, sFcur, sFnxt, sFinc, sClr, sWp = range(68, 78)
sC = 96
sK = 98
sTag = 78
sSeg = 79

def gen_worker(A, opt):
    ts = opt.get('tsw2', False)
    nts = [0]
    def stamp(inpass=False):
        if ts:
            A(f's_memrealtime s[100:101]')
            if inpass: A(f's_lshl_b32 m0, s{sPass}, 3\ns_add_u32 m0, m0, {nts[0]}')
            else: A(f's_mov_b32 m0, {nts[0]}')
            A(f's_waitcnt lgkmcnt(0)\nv_writelane_b32 v255, s100, m0'); nts[0] += 1
    ln = 16
    stamp()
    A(f'''
    s_sub_u32 s{sT0}, s{sSlot}, 32
    s_mul_i32 s{sH}, s{sT0}, 9363
    s_lshr_b32 s{sH}, s{sH}, 16                 ; head = i / 7
    s_mul_i32 s{sT1}, s{sH}, 7
    s_sub_u32 s{sG}, s{sT0}, s{sT1}             ; group = i % 7
    s_cmp_eq_u32 s{sG}, 0
    s_cselect_b32 s{sN}, 10, 9
    s_and_b32 s{sWp}, s{sW}, 1
    v_and_b32 v{ln}, 63, v0
    v_mov_b32 v25, v0
    v_lshlrev_b32 v{vL16}, 4, v{ln}
    ''')
    X = 32
    A(f'''
    s_mul_i32 s{sT0}, s{sW}, 7
    s_add_u32 s{sT0}, s{sT0}, s{sG}             ; seg
    s_lshl_b32 s{sT1}, s{sT0}, 5
    s_add_u32 s{sT1}, s{sT1}, s{sH}
    s_lshl_b32 s{sT1}, s{sT1}, 10
    v_add_u32 v17, s{sT1}, v{vL16}
    ''')
    A(f'''
    v_mul_u32_u24 v18, {7 * 2048}, v{ln}
    s_lshl_b32 s{sT1}, s{sG}, 11
    s_lshl_b32 s{sFnxt}, s{sH}, 6
    s_add_u32 s{sFnxt}, s{sFnxt}, s{sT1}
    s_add_u32 s{sFnxt}, s{sFnxt}, {FL_BASE}
    v_mov_b32 v19, {64 * 2048}
    v_cmp_le_u32 vcc, s{sN}, v{ln}
    v_cndmask_b32 v18, v18, v19, vcc
    v_mov_b32 v19, 0
    v_cmp_ge_u32 vcc, s{sN}, v25
    s_mov_b64 exec, vcc
    buffer_store_dword v19, v18, {srd(S_WS)}, s{sFnxt} offen sc1
    s_mov_b64 exec, -1
    ''')
    for r in range(3):
        if r: A(f'v_add_u32 v17, {28 * 32 * 1024}, v17')
        A(f'buffer_load_dwordx4 {vr(X + 4 * r, 4)}, v17, {srd(S_X)}, 0 offen')
    A(f'''
    v_lshrrev_b32 v20, 5, v{ln}                 ; hi
    v_bfe_u32 v21, v{ln}, 4, 1                  ; c/16
    v_and_b32 v22, 15, v{ln}                    ; c%16
    v_and_b32 v23, 31, v{ln}                    ; c
    v_lshlrev_b32 v24, 4, v22
    v_lshl_add_u32 v{vKa}, v20, 8, v24
    v_lshl_add_u32 v{vVa}, v21, 11, v{vKa}
    v_lshl_add_u32 v{vKa}, v21, 10, v{vKa}
    v_lshl_add_u32 v{vMa}, v20, 8, v{vKa}
    v_mov_b32 v{vOne}, 1
    v_and_b32 v{vPo}, 3, v{ln}
    v_lshlrev_b32 v{vPo}, 10, v{vPo}
    s_mov_b32 s{sP0}, 0x05040100
    s_mov_b32 s{sP1}, 0x07060302
    s_lshl_b32 s{sT0}, s{sT0}, 15
    s_lshl_b32 s{sT1}, s{sH}, 4
    s_add_u32 s{sT0}, s{sT0}, s{sT1}
    s_add_u32 s{sT0}, s{sT0}, {XN_BASE}
    v_lshlrev_b32 v17, 9, v{ln}
    v_add_u32 v17, s{sT0}, v17
    s_mov_b32 s{sT1}, 0xffff0000
    s_waitcnt vmcnt(0)
    ''')
    F = 48
    def allred(regs):
        for mod in ('quad_perm:[1,0,3,2]', 'quad_perm:[2,3,0,1]', 'row_half_mirror', 'row_mirror'):
            for r in regs: A(f'v_add_f32 v{r}, v{r}, v{r} {mod} row_mask:0xf bank_mask:0xf')
        for sw in ('16', '32'):
            for r in regs: A(f'v_mov_b32 v{r + 1}, v{r}')
            for r in regs: A(f'v_permlane{sw}_swap_b32 v{r}, v{r + 1}')
            for r in regs: A(f'v_add_f32 v{r}, v{r}, v{r + 1}')
    SU = [72, 74, 76]
    for r in range(3):
        f = F + 8 * r
        for d in range(4):
            A(f'v_lshlrev_b32 v{f + 2 * d}, 16, v{X + 4 * r + d}\nv_and_b32 v{f + 2 * d + 1}, s{sT1}, v{X + 4 * r + d}')
        A(f'v_pk_add_f32 {vr(SU[r], 2)}, {vr(f, 2)}, {vr(f + 2, 2)}')
        A(f'v_pk_add_f32 {vr(78, 2)}, {vr(f + 4, 2)}, {vr(f + 6, 2)}')
        A(f'v_pk_add_f32 {vr(SU[r], 2)}, {vr(SU[r], 2)}, {vr(78, 2)}')
        A(f'v_add_f32 v{SU[r]}, v{SU[r]}, v{SU[r] + 1}')
    allred(SU)
    for r in range(3):
        f = F + 8 * r
        A(f'v_mul_f32 v{SU[r]}, {f32(-1.0 / 512)}, v{SU[r]}')
        for d in range(4): A(f'v_pk_add_f32 {vr(f + 2 * d, 2)}, {vr(f + 2 * d, 2)}, {vr(SU[r], 2)} op_sel_hi:[1,0]')
        A(f'v_pk_mul_f32 {vr(SU[r], 2)}, {vr(f, 2)}, {vr(f, 2)}')
        for d in range(1, 4): A(f'v_pk_fma_f32 {vr(SU[r], 2)}, {vr(f + 2 * d, 2)}, {vr(f + 2 * d, 2)}, {vr(SU[r], 2)}')
        A(f'v_add_f32 v{SU[r]}, v{SU[r]}, v{SU[r] + 1}')
    allred(SU)
    A(f'v_mov_b32 v78, {f32(1e-5)}')
    for r in range(3):
        f = F + 8 * r
        A(f'v_fmac_f32 v78, {f32(1.0 / 512)}, v{SU[r]}' if False else f'v_fmamk_f32 v{SU[r]}, v{SU[r]}, {f32(1.0 / 512)}, v78')
        A(f'v_rsq_f32 v{SU[r]}, v{SU[r]}')
        for d in range(4): A(f'v_pk_mul_f32 {vr(f + 2 * d, 2)}, {vr(f + 2 * d, 2)}, {vr(SU[r], 2)} op_sel_hi:[1,0]')
        for d in range(4): A(f'v_cvt_pk_bf16_f32 v{X + 4 * r + d}, v{f + 2 * d}, v{f + 2 * d + 1}')
        if r: A(f'v_add_u32 v17, {28 * 32768}, v17')
        A(f'buffer_store_dwordx4 {vr(X + 4 * r, 4)}, v17, {srd(S_WS)}, 0 offen sc1')
    A(f'''
    s_waitcnt vmcnt(0)
    s_barrier
    s_cmp_lg_u32 s{sW}, 0
    s_cbranch_scc1 L_w_noinit
    ''')
    signal_init(A, 17, 18, sT0)
    A(f'''
    L_w_noinit:
    s_cmp_lt_u32 s{sH}, 28
    s_cselect_b32 s{S_WG + 2}, s{S_WG + 2}, 0
    s_cselect_b32 s{S_WU + 2}, s{S_WU + 2}, 0
    s_cselect_b32 s{S_WD + 2}, s{S_WD + 2}, 0
    s_mov_b32 s{sPass}, 0
    s_cmp_eq_u32 s{sW}, 2
    s_cselect_b32 s{sE}, 1, 0
    s_mov_b32 s{sE + 1}, 0
    s_mov_b32 s{sFinc}, {7 * 2048}
    s_mov_b32 s{S_W + 2}, {1 << 22}
    s_mov_b32 s{S_W + 3}, 0x20000
    s_cmp_lt_u32 s{sW}, 2
    s_cselect_b32 s{S_W}, s{S_WK}, s{S_WV}
    s_cselect_b32 s{S_W + 1}, s{S_WK + 1}, s{S_WV + 1}
    ''')
    stamp()
    STG = 96; NB = 7; TMP = 80
    def wload(kind):
        vm = Cnt(A, 'vmcnt', 63)
        stride = 8192 if kind == 'a' else 3584
        for j in range(8): A(f's_mov_b32 s{sJ + j}, {j * stride}')
        if kind == 'a':
            A(f'''
            v_lshlrev_b32 v{vWa}, 16, v20
            v_lshl_add_u32 v{vWa}, v23, 2, v{vWa}
            s_lshl_b32 s{sT0}, s{sH}, 8
            s_lshl_b32 s{sT1}, s{sWp}, 7
            s_add_u32 s{sT0}, s{sT0}, s{sT1}
            v_add_u32 v{vWa}, s{sT0}, v{vWa}
            ''')
        else:
            A(f'''
            v_mul_u32_u24 v{vWa}, {8 * 3584}, v20
            v_lshl_add_u32 v{vWa}, v22, 2, v{vWa}
            s_lshl_b32 s{sT0}, s{sH}, 7
            s_lshl_b32 s{sT1}, s{sWp}, 6
            s_add_u32 s{sT0}, s{sT0}, s{sT1}
            v_add_u32 v{vWa}, s{sT0}, v{vWa}
            s_mov_b32 s{sC}, 0xffff
            s_mov_b32 s{sC + 1}, 0xffff
            ''')
        nb = NB if kind == 'a' else 3
        toks = {}
        for n in range(32 + nb - 1):
            if n < 32:
                b0 = STG + 8 * (n % nb)
                if kind == 'a':
                    for j in range(8): toks[n] = vm.issue(f'buffer_load_dword v{b0 + j}, v{vWa}, {srd(S_W)}, s{sJ + j} offen')
                else:
                    A(f's_mov_b64 exec, s[{sC}:{sC + 1}]')
                    for j in range(8): vm.issue(f'buffer_load_dword v{b0 + j}, v{vWa}, {srd(S_WG)}, s{sJ + j} offen')
                    A(f's_not_b64 exec, exec')
                    for j in range(8): toks[n] = vm.issue(f'buffer_load_dword v{b0 + j}, v{vWa}, {srd(S_WU)}, s{sJ + j} offen')
                    A(f's_mov_b64 exec, -1')
                if n < 31: A(f'v_add_u32 v{vWa}, {16 * stride}, v{vWa}')
            m = n - nb + 1
            if m >= 0:
                b0 = STG + 8 * (m % nb)
                vm.wait(toks[m])
                for T in range(2):
                    for d in range(4): A(f'v_perm_b32 v{TMP + 4 * T + d}, v{b0 + 2 * d + 1}, v{b0 + 2 * d}, s{sP0 + T}')
                for i in range(8): A(f'v_accvgpr_write_b32 a{8 * m + i}, v{TMP + i}')
    ACC = 32; XF = 64; NX = 6; PKR = 88
    def dma(n0, n1):
        for i in range(n0, n1):
            if i % 4 == 0:
                A(f's_add_u32 m0, s{sBufD}, {i * 1024}')
                if i: A(f's_add_u32 s{sT1}, s{sXn}, 4096')
            A(f'buffer_load_dwordx4 v{vL16}, {srd(S_WS)}, s{sXn if i < 4 else sT1} offen offset:{(i % 4) * 1024} sc1 lds')
    def p1loop(kind):
        lds = Cnt(A, 'lgkmcnt', 15)
        A(f'L_p1_{kind}:')
        A(f'v_add_u32 v{vXa}, s{sBuf}, v{vL16}')
        tk = {}
        rd = lambda k: lds.issue(f'ds_read_b128 {vr(XF + 4 * (k % NX), 4)}, v{vXa} offset:{k * 1024}')
        for k in range(NX - 1): tk[k] = rd(k)
        for k in range(32):
            lds.wait(tk[k])
            x = vr(XF + 4 * (k % NX), 4)
            for T in range(2):
                w = ar(8 * k + 4 * T, 4); acc = vr(ACC + 16 * T, 16)
                a, b = (x, w) if kind == 'v' else (w, x)
                A(f"v_mfma_f32_32x32x16_bf16 {acc}, {a}, {b}, {'0' if k == 0 else acc}")
                if T == 0 and k + NX - 1 < 32: tk[k + NX - 1] = rd(k + NX - 1)
                if k == 16 and T == 1:
                    A(f's_waitcnt vmcnt(0)\ns_barrier')
                    if kind != 'k': A(f's_mov_b64 exec, s[{sE}:{sE + 1}]\nbuffer_store_dword v{vOne}, off, {srd(S_WS)}, s{sFcur} sc1\ns_mov_b64 exec, -1')
                if 17 <= k <= 20 and T == 1: dma(2 * (k - 17), 2 * (k - 17) + 2)
                if k == 22 and T == 1:
                    A(f'''
                    s_mov_b32 s{sFcur}, s{sFnxt}
                    s_add_u32 s{sFnxt}, s{sFnxt}, s{sFinc}
                    s_add_u32 s{sXn}, s{sXn}, {7 * 32768}
                    s_lshl_b32 s{sT0}, s{sW}, 13
                    s_add_u32 s{sBufD}, s{sBuf}, s{sT0}
                    ''')
                if k == 23 and T == 1:
                    A(f'''
                    s_add_u32 s{sBuf}, s{sBuf}, 32768
                    s_cmp_eq_u32 s{sBuf}, {3 * 32768}
                    s_cselect_b32 s{sBuf}, 0, s{sBuf}
                    s_add_u32 s{sIt}, s{sIt}, 1
                    ''')
                if k == 24 and T == 1 and kind == 'v':
                    A(f'v_mov_b64 {vr(PKR, 2)}, -1\nv_mov_b64 {vr(PKR + 2, 2)}, -1')
                    A(f'buffer_store_dwordx4 {vr(PKR, 4)}, v{vL16}, {srd(S_WS)}, s{sClr} offen sc1')
                if k == 26 and T == 1 and kind == 'v':
                    A(f'buffer_store_dwordx4 {vr(PKR, 4)}, v{vL16}, {srd(S_WS)}, s{sClr} offen offset:1024 sc1')
                    A(f's_add_u32 s{sClr}, s{sClr}, {7 * 32 * 4096}')
        cvt = lambda d, a, b: A(f'v_cvt_pk_bf16_f32 v{d}, v{a}, v{b}')
        if kind == 'k':
            for rg in range(4):
                d = PKR + 4 + 4 * rg
                for j in range(4): cvt(d + j, ACC + 4 * rg + j, ACC + 16 + 4 * rg + j)
                A(f'buffer_store_dwordx4 {vr(d, 4)}, v{vKa}, {srd(S_WS)}, s{sDst} offen offset:{(rg // 2) * 2048 + (rg % 2) * 512} sc1')
        elif kind == 'v':
            for T in range(2):
                for rg in range(2):
                    d = PKR + 4 + 8 * T + 4 * rg; a = ACC + 16 * T + 4 * rg
                    cvt(d, a, a + 1); cvt(d + 1, a + 2, a + 3); cvt(d + 2, a + 8, a + 9); cvt(d + 3, a + 10, a + 11)
                    A(f'buffer_store_dwordx4 {vr(d, 4)}, v{vVa}, {srd(S_WS)}, s{sDst} offen offset:{T * 1024 + rg * 512} sc1')
        else:
            Z = XF
            prs = [(T, p) for T in range(2) for p in range(4)]
            g = lambda T, p: vr(ACC + 16 * T + 2 * p, 2)
            u = lambda T, p: vr(ACC + 16 * T + 8 + 2 * p, 2)
            z = lambda T, p: vr(Z + 8 * T + 2 * p, 2)
            for T, p in prs: A(f'v_pk_mul_f32 {z(T, p)}, {g(T, p)}, {g(T, p)}')
            for T, p in prs: A(f'v_pk_fma_f32 {z(T, p)}, {z(T, p)}, s[{sK}:{sK + 1}], s[{sK}:{sK + 1}] op_sel:[0,0,1] op_sel_hi:[1,0,1]')
            for T, p in prs: A(f'v_pk_mul_f32 {z(T, p)}, {z(T, p)}, {g(T, p)}')
            for i in range(16): A(f'v_exp_f32 v{Z + i}, v{Z + i}')
            for T, p in prs: A(f'v_pk_mul_f32 {g(T, p)}, {g(T, p)}, {u(T, p)}')
            for T, p in prs: A(f'v_pk_add_f32 {z(T, p)}, {z(T, p)}, 1.0 op_sel_hi:[1,0]')
            for i in range(16): A(f'v_rcp_f32 v{Z + i}, v{Z + i}')
            for T, p in prs: A(f'v_pk_mul_f32 {g(T, p)}, {g(T, p)}, {z(T, p)}')
            for rg in range(2):
                d = PKR + 4 + 4 * rg
                for j in range(4): cvt(d + j, ACC + 4 * rg + j, ACC + 16 + 4 * rg + j)
                A(f'buffer_store_dwordx4 {vr(d, 4)}, v{vL16}, {srd(S_WS)}, s{sDst} offen offset:{rg * 1024} sc1')
        A(f'''
        s_add_u32 s{sDst}, s{sDst}, {7 * 32 * 16384}
        s_cmp_lt_u32 s{sIt}, s{sN}
        s_cbranch_scc1 L_p1_{kind}
        s_branch L_p1_done
        ''')
    A('L_pass:')
    A(f's_cmp_gt_u32 s{sW}, 1\ns_cselect_b32 s{sT0}, s{sPass}, 0\ns_cmp_lg_u32 s{sT0}, 0\ns_cbranch_scc1 L_wl_f')
    wload('a')
    A('L_wl_done:')
    stamp(True)
    A(f's_cmp_lg_u32 s{sPass}, 0\ns_cbranch_scc1 L_w_nowait')
    wait_init(A, 'L_w_wi', ln, 17, 18, sCnt)
    A(f'''
    L_w_nowait:
    s_lshl_b32 s{sXn}, s{sG}, 15
    s_lshl_b32 s{sBufD}, s{sW}, 13
    s_add_u32 s{sXn}, s{sXn}, s{sBufD}
    s_add_u32 s{sXn}, s{sXn}, {XN_BASE}
    ''')
    dma(0, 8)
    A(f's_add_u32 s{sXn}, s{sXn}, {7 * 32768}\ns_add_u32 s{sBufD}, s{sBufD}, 32768')
    dma(0, 8)
    A(f'''
    s_add_u32 s{sXn}, s{sXn}, {7 * 32768}
    s_add_u32 s{sBufD}, s{sBufD}, 32768
    s_mov_b32 s{sBuf}, 0
    s_mov_b32 s{sIt}, 0
    s_lshl_b32 s{sT0}, s{sG}, 5
    s_add_u32 s{sT0}, s{sT0}, s{sH}             ; seg*32+h
    s_lshl_b32 s{sDst}, s{sT0}, 14
    s_lshl_b32 s{sClr}, s{sT0}, 12
    s_lshl_b32 s{sT1}, s{sWp}, 11
    s_add_u32 s{sClr}, s{sClr}, s{sT1}
    s_add_u32 s{sClr}, s{sClr}, {KVM_BASE}
    s_add_u32 s{sT1}, s{sDst}, {QH_BASE + 12288}
    s_cmp_lg_u32 s{sPass}, 0
    s_cselect_b32 s{sFcur}, s{sFcur}, s{sT1}
    s_cselect_b32 s{sFnxt}, s{sT1}, s{sFnxt}
    s_cselect_b32 s{sT0}, {QH_BASE - KV_BASE}, 0
    s_add_u32 s{sDst}, s{sDst}, s{sT0}
    s_add_u32 s{sDst}, s{sDst}, {KV_BASE}
    s_lshl_b32 s{sT0}, s{sW}, 12
    s_waitcnt vmcnt(8)
    s_barrier
    ''')
    stamp(True)
    A(f'''
    s_cmp_lt_u32 s{sW}, 2
    s_cbranch_scc1 L_go_k
    s_cmp_lg_u32 s{sPass}, 0
    s_cbranch_scc1 L_go_f
    s_add_u32 s{sDst}, s{sDst}, s{sT0}
    ''')
    p1loop('v')
    A(f'L_go_k:\ns_add_u32 s{sDst}, s{sDst}, s{sT0}')
    p1loop('k')
    kk = -2 * math.log2(math.e) * 0.7978845608028654
    A(f'''
    L_go_f:
    s_lshl_b32 s{sT0}, s{sWp}, 11
    s_add_u32 s{sDst}, s{sDst}, s{sT0}
    s_add_u32 s{sDst}, s{sDst}, 8192
    s_mov_b32 s{sK}, {f32(kk * 0.044715)}
    s_mov_b32 s{sK + 1}, {f32(kk)}
    ''')
    p1loop('f')
    A('L_wl_f:')
    wload('f')
    A('s_branch L_wl_done')
    A(f'''
    L_p1_done:
    s_waitcnt vmcnt(0)
    s_barrier
    s_mov_b64 exec, s[{sE}:{sE + 1}]
    buffer_store_dword v{vOne}, off, {srd(S_WS)}, s{sFcur} sc1
    s_mov_b64 exec, -1
    ''')
    stamp(True)
    A(f'''
    s_cmp_lg_u32 s{sPass}, 0
    s_cbranch_scc1 L_p2
    s_mov_b32 s{sPass}, 1
    s_mov_b32 s{S_W}, s{S_WQ}
    s_mov_b32 s{S_W + 1}, s{S_WQ + 1}
    s_add_u32 s{sT0}, s{sG}, 64
    s_lshl_b32 s{sT0}, s{sT0}, 5
    s_add_u32 s{sT0}, s{sT0}, s{sH}
    s_lshl_b32 s{sT0}, s{sT0}, 6
    s_add_u32 s{sFcur}, s{sT0}, {FL_BASE}
    s_mov_b32 s{sFinc}, 0
    v_mov_b64 {vr(PKR, 2)}, 0
    v_mov_b64 {vr(PKR + 2, 2)}, 0
    s_lshl_b32 s{sT0}, s{sG}, 21
    s_lshl_b32 s{sT1}, s{sH}, 15
    s_add_u32 s{sT0}, s{sT0}, s{sT1}
    s_lshl_b32 s{sT1}, s{sW}, 13
    s_add_u32 s{sT0}, s{sT0}, s{sT1}
    s_add_u32 s{sT0}, s{sT0}, {PART_BASE}
    ''')
    for i in range(16):
        A(f'buffer_store_dwordx4 {vr(PKR, 4)}, v{vL16}, {srd(S_WS)}, s{sT0} offen offset:{(i % 4) * 1024} sc1')
        if i % 4 == 3 and i < 15: A(f's_add_u32 s{sT0}, s{sT0}, {4096 if i != 7 else (1 << 20) - 4096}')
    A('s_branch L_pass')
    gen_p2(A, opt, ln, stamp, ts)

def gen_p2(A, opt, ln, stamp, ts):
    A('L_p2:')
    vm = Cnt(A, 'vmcnt', 63)
    STG = 96; NB = 7; TMP = 80
    A(f'''
    v_lshlrev_b32 v{vWa}, 13, v20
    v_lshl_add_u32 v{vWa}, v23, 3, v{vWa}
    s_lshl_b32 s{sT0}, s{sW}, 8
    v_add_u32 v{vWa}, s{sT0}, v{vWa}
    s_lshl_b32 s{sT0}, s{sH}, 17
    s_mov_b32 s{sT1}, 0x05040100
    ''')
    toks = {}
    for n in range(12 + NB - 1):
        if n < 12:
            b0 = STG + 16 * (n % NB)
            if n == 8: A(f's_lshl_b32 s{sT0}, s{sH}, 16')
            for j in range(8):
                toks[n] = vm.issue(f'buffer_load_dwordx2 {vr(b0 + 2 * j, 2)}, v{vWa}, {srd(S_WO if n < 8 else S_WD)}, s{sT0} offen offset:{(j % 4) * 1024}')
                if j % 4 == 3: A(f's_add_u32 s{sT0}, s{sT0}, {4096 if j == 3 else 12288}')
        m = n - NB + 1
        if m >= 0:
            b0 = STG + 16 * (m % NB)
            vm.wait(toks[m])
            for t in range(4):
                for d in range(4): A(f'v_perm_b32 v{TMP + 4 * t + d}, v{b0 + 4 * d + 2 + t // 2}, v{b0 + 4 * d + t // 2}, s{sP0 + t % 2}')
            for i in range(16): A(f'v_accvgpr_write_b32 a{16 * m + i}, v{TMP + i}')
    stamp()
    MK, KF, HF, KM, OUT, O, P = 32, 48, 80, 96, 112, 176, 240
    VF, QF = 192, 224
    sKV, sKV2, sQH, sQH2, sKvm, sPs, sPl, sXo = 50, 51, 52, 53, 54, 55, 56, 57
    sLo, sHi = sK, sK + 1
    A(f'''
    v_lshlrev_b32 v17, 6, v23
    s_add_u32 s{sT0}, s{sG}, 64
    s_lshl_b32 s{sT0}, s{sT0}, 11
    s_add_u32 s{sT0}, s{sT0}, {FL_BASE}
    s_mov_b32 s{sCnt}, 0
    L_p2_rdy:
    buffer_load_dword v18, v17, {srd(S_WS)}, s{sT0} offen sc1
    s_add_u32 s{sCnt}, s{sCnt}, 1
    s_cmp_gt_u32 s{sCnt}, {SPIN}
    s_cbranch_scc1 L_end
    s_waitcnt vmcnt(0)
    v_cmp_eq_u32 vcc, 0, v18
    s_cbranch_vccnz L_p2_rdy
    s_lshl_b32 s{sT0}, s{sG}, 5
    s_add_u32 s{sT0}, s{sT0}, s{sH}
    s_lshl_b32 s{sKV}, s{sT0}, 14
    s_add_u32 s{sKV}, s{sKV}, {KV_BASE}
    s_lshl_b32 s{sKvm}, s{sT0}, 12
    s_add_u32 s{sKvm}, s{sKvm}, {KVM_BASE}
    s_mov_b32 s{sSeg}, s{sG}
    s_mov_b32 s{sIt}, 0
    s_mov_b32 s{sC}, {f32(128 ** -0.5 * math.log2(math.e))}
    s_mov_b32 s{sC + 1}, s{sC}
    s_mov_b32 s{sLo}, 0x00003f80
    s_mov_b32 s{sHi}, 0x3f800000
    s_mul_i32 s{sT0}, s{sW}, 2304
    v_mul_u32_u24 v{vKw}, {4 * 272}, v20
    v_lshl_add_u32 v{vKw}, v23, 2, v{vKw}
    v_add_u32 v{vKw}, s{sT0}, v{vKw}
    v_and_b32 v17, 7, v{ln}
    v_mul_u32_u24 v{vKr}, 272, v17
    v_lshl_add_u32 v{vKr}, v20, 4, v{vKr}
    v_add_u32 v{vKr}, s{sT0}, v{vKr}
    v_lshrrev_b32 v17, 4, v{ln}
    v_lshl_add_u32 v{vRa}, v17, 10, v24
    s_lshl_b32 s{sT0}, s{sW}, 8
    v_add_u32 v{vRa}, s{sT0}, v{vRa}
    ; out address: token = 8(j/2) + 4(w/2) + 2(j%2) + hi ; col = 128(h/8) + 64(w%2) + 4q + 2(l/16%2)
    s_and_b32 s{sT0}, s{sH}, 7
    s_lshr_b32 s{sT1}, s{sT0}, 1
    s_lshl_b32 s{sT1}, s{sT1}, 3
    s_and_b32 s{sT0}, s{sT0}, 1
    s_lshl_b32 s{sT0}, s{sT0}, 1
    s_add_u32 s{sT0}, s{sT0}, s{sT1}
    s_lshr_b32 s{sT1}, s{sW}, 1
    s_lshl_b32 s{sT1}, s{sT1}, 2
    s_add_u32 s{sT0}, s{sT0}, s{sT1}
    s_lshl_b32 s{sT0}, s{sT0}, 10
    s_lshr_b32 s{sT1}, s{sH}, 3
    s_lshl_b32 s{sT1}, s{sT1}, 8
    s_add_u32 s{sT0}, s{sT0}, s{sT1}
    s_lshl_b32 s{sT1}, s{sWp}, 7
    s_add_u32 s{sT0}, s{sT0}, s{sT1}
    v_lshlrev_b32 v{vOa}, 10, v20
    v_lshl_add_u32 v{vOa}, v22, 3, v{vOa}
    v_lshl_add_u32 v{vOa}, v21, 2, v{vOa}
    v_add_u32 v{vOa}, s{sT0}, v{vOa}
    v_lshlrev_b32 v17, 2, v20
    v_sub_u32 v17, v23, v17
    v_mov_b32 v18, 0xff800000
    ''')
    for r in range(16):
        A(f'v_cmp_gt_i32 vcc, {8 * (r // 4) + r % 4}, v17\nv_cndmask_b32 v{MK + r}, 0, v18, vcc')
    def prefetch(vm):
        t = {}
        A(f's_add_u32 s{sKV2}, s{sKV}, 4096\ns_add_u32 s{sQH}, s{sKV}, {QH_BASE - KV_BASE}\ns_add_u32 s{sQH2}, s{sQH}, 4096')
        L = []
        for k in range(8):
            off = ((k // 2) % 2) * 2048 + (k % 2) * 512
            L.append((('k', k), f'buffer_load_dwordx4 {vr(KF + 4 * k, 4)}, v{vKa}, {srd(S_WS)}, s{sKV if k < 4 else sKV2} offen offset:{off} sc1'))
            L.append((('q', k), f'buffer_load_dwordx4 {ar(QF + 4 * k, 4)}, v{vKa}, {srd(S_WS)}, s{sQH if k < 4 else sQH2} offen offset:{off} sc1'))
        L.append((None, f's_add_u32 s{sQH}, s{sQH}, 8192'))
        L.append((None, f's_add_u32 s{sQH2}, s{sKV}, 8192'))
        L.append((None, f's_add_u32 s{sKV2}, s{sKV}, 12288'))
        for k in range(4):
            L.append((('h', k), f'buffer_load_dwordx4 {vr(HF + 4 * k, 4)}, v{vL16}, {srd(S_WS)}, s{sQH} offen offset:{k * 1024} sc1'))
        for wp in range(2):
            for T in range(2):
                for rg in range(2):
                    L.append((('v', wp, T, rg), f'buffer_load_dwordx4 {ar(VF + 16 * wp + 8 * T + 4 * rg, 4)}, v{vVa}, {srd(S_WS)}, s{sQH2 if wp == 0 else sKV2} offen offset:{T * 1024 + rg * 512} sc1'))
        return L
    for key, t in prefetch(None): A(t)
    mf = lambda d, a, b, c: A(f'v_mfma_f32_32x32x16_bf16 {vr(d, 16)}, {a}, {b}, {c}')
    cvt = lambda d, a, b: A(f'v_cvt_pk_bf16_f32 v{d}, v{a}, v{b}')
    S = O; SM = O + 16
    A('L_p2_seg:')
    A(f'''
    s_lshl_b32 s{sXo}, s{sSeg}, 15
    s_waitcnt vmcnt(0)
    buffer_load_dword v{vXr}, v{vOa}, {srd(S_X)}, s{sXo} offen
    ''')
    for k in range(8): mf(S, vr(KF + 4 * k, 4), ar(QF + 4 * k, 4), vr(MK, 16) if k == 0 else vr(S, 16))
    for k in range(4):
        for t in range(4):
            mf(OUT + 16 * t, vr(HF + 4 * k, 4), ar(128 + 16 * k + 4 * t, 4), '0' if k == 0 else vr(OUT + 16 * t, 16))
            if k == 1:
                a = S + 4 * t
                if t == 0: A(f'v_max3_f32 v{vT0}, v{a}, v{a + 1}, v{a + 2}\nv_max_f32 v{vT0}, v{vT0}, v{a + 3}')
                else: A(f'v_max3_f32 v{vT0}, v{vT0}, v{a}, v{a + 1}\nv_max3_f32 v{vT0}, v{vT0}, v{a + 2}, v{a + 3}')
    A(f'''
    s_and_b32 s{sT0}, s{sIt}, 1
    s_lshl_b32 s{sT0}, s{sT0}, 20
    s_lshl_b32 s{sT1}, s{sG}, 21
    s_add_u32 s{sT0}, s{sT0}, s{sT1}
    s_add_u32 s{sT0}, s{sT0}, {PART_BASE}
    s_lshl_b32 s{sPl}, s{sH}, 15
    s_add_u32 s{sPl}, s{sPl}, s{sT0}
    s_lshl_b32 s{sPs}, s{sW}, 18
    s_add_u32 s{sPs}, s{sPs}, s{sT0}
    s_lshl_b32 s{sT1}, s{sH}, 10
    s_add_u32 s{sPs}, s{sPs}, s{sT1}
    s_lshr_b32 s{sTag}, s{sIt}, 1
    s_and_b32 s{sTag}, s{sTag}, 1
    s_xor_b32 s{sTag}, s{sTag}, 1
    s_mov_b32 s{sCnt}, 0
    s_cmp_eq_u32 s{sSeg}, 63
    s_cbranch_scc1 L_p2_full
    L_p2_light:
    buffer_load_dword v{vT1}, v{vPo}, {srd(S_WS)}, s{sKvm} offen sc1
    s_add_u32 s{sCnt}, s{sCnt}, 1
    s_cmp_gt_u32 s{sCnt}, {SPIN}
    s_cbranch_scc1 L_end
    s_waitcnt vmcnt(0)
    v_cmp_eq_u32 vcc, -1, v{vT1}
    s_cbranch_vccnz L_p2_light
    L_p2_full:
    ''')
    for wp in range(2):
        for b in range(2):
            A(f'buffer_load_dwordx4 {vr(KM + 8 * wp + 4 * b, 4)}, v{vMa}, {srd(S_WS)}, s{sKvm} offen offset:{wp * 2048 + b * 256} sc1')
    A(f'''
    s_add_u32 s{sCnt}, s{sCnt}, 1
    s_cmp_gt_u32 s{sCnt}, {SPIN}
    s_cbranch_scc1 L_end
    ''')
    for i in range(4):
        b = KM + 4 * i
        A(f's_waitcnt vmcnt({3 - i})')
        A(f'ds_write2_b32 v{vKw}, v{b}, v{b + 1} offset0:{(i // 2) * 32 + (i % 2) * 136} offset1:{(i // 2) * 32 + (i % 2) * 136 + 68}')
        if i == 0: A(f'v_max3_u32 v{vT1}, v{b}, v{b + 1}, v{b + 2}\nv_max_u32 v{vT1}, v{vT1}, v{b + 3}')
        else: A(f'v_max3_u32 v{vT1}, v{vT1}, v{b}, v{b + 1}\nv_max3_u32 v{vT1}, v{vT1}, v{b + 2}, v{b + 3}')
    A(f'''
    v_cmp_eq_u32 vcc, -1, v{vT1}
    s_waitcnt lgkmcnt(0)
    s_cbranch_vccnz L_p2_full
    ''')
    for k in range(8): A(f'ds_read_b128 {vr(KF + 4 * k, 4)}, v{vKr} offset:{32 * k}')
    for wp in range(2): A(f'v_swap_b32 v{KM + 8 * wp + 3}, v{KM + 8 * wp + 6}')
    for k in range(8):
        A(f's_waitcnt lgkmcnt({7 - k})')
        mf(SM, vr(KF + 4 * k, 4), ar(QF + 4 * k, 4), '0' if k == 0 else vr(SM, 16))
    A(f'''
    v_max3_f32 v{vT0}, v{vT0}, v{SM}, v{SM + 1}
    v_max3_f32 v{vT0}, v{vT0}, v{SM + 2}, v{SM + 3}
    v_mov_b32 v{vT1}, v{vT0}
    v_permlane32_swap_b32 v{vT0}, v{vT1}
    v_max_f32 v{vT0}, v{vT0}, v{vT1}
    v_mul_f32 v{vT1}, s{sC}, v{vT0}
    ''')
    for p in range(10): A(f'v_pk_fma_f32 {vr(S + 2 * p, 2)}, {vr(S + 2 * p, 2)}, s[{sC}:{sC + 1}], {vr(vT1, 2)} op_sel_hi:[1,1,0] neg_lo:[0,0,1] neg_hi:[0,0,1]')
    for i in range(20): A(f'v_exp_f32 v{S + i}, v{S + i}')
    W = SM + 4
    for p in range(5): A(f'v_pk_add_f32 {vr(W + 2 * p, 2)}, {vr(S + 4 * p, 2)}, {vr(S + 4 * p + 2, 2)}')
    A(f'''
    v_pk_add_f32 {vr(W, 2)}, {vr(W, 2)}, {vr(W + 2, 2)}
    v_pk_add_f32 {vr(W + 4, 2)}, {vr(W + 4, 2)}, {vr(W + 6, 2)}
    v_pk_add_f32 {vr(W, 2)}, {vr(W, 2)}, {vr(W + 8, 2)}
    v_pk_add_f32 {vr(W, 2)}, {vr(W, 2)}, {vr(W + 4, 2)}
    v_add_f32 v{W}, v{W}, v{W + 1}
    v_mov_b32 v{W + 1}, v{W}
    v_permlane32_swap_b32 v{W}, v{W + 1}
    v_add_f32 v{W}, v{W}, v{W + 1}
    v_rcp_f32 v{W}, v{W}
    ''')
    for p in range(10): A(f'v_pk_mul_f32 {vr(S + 2 * p, 2)}, {vr(S + 2 * p, 2)}, {vr(W, 2)} op_sel_hi:[1,0]')
    for rg in range(2):
        a = S + 4 * rg; d = P + 4 * rg
        cvt(d, a, a + 1); cvt(d + 1, a + 2, a + 3); cvt(d + 2, a + 8, a + 9); cvt(d + 3, a + 10, a + 11)
    cvt(P + 8, SM, SM + 1); cvt(P + 9, SM + 2, SM + 3)
    OF = KM
    for wp in range(2):
        for T in range(2):
            o = O + 32 * wp + 16 * T
            for rg in range(2): mf(o, ar(VF + 16 * wp + 8 * T + 4 * rg, 4), vr(P + 4 * rg, 4), '0' if rg == 0 else vr(o, 16))
            A(f'v_mfma_f32_32x32x8_bf16 {vr(o, 16)}, {vr(KM + 8 * wp + 4 * T + 2, 2)}, {vr(P + 8, 2)}, {vr(o, 16)}')
    A(f'''
    s_add_u32 s{sIt}, s{sIt}, 1
    s_add_u32 s{sSeg}, s{sSeg}, 7
    s_add_u32 s{sKV}, s{sKV}, {7 * 32 * 16384}
    s_add_u32 s{sKvm}, s{sKvm}, {7 * 32 * 4096}
    ''')
    def ocvt(k):
        o = O + 32 * (k // 4) + 4 * (k % 4)
        for j in range(4): cvt(o + j, o + j, o + 16 + j)
        return vr(o, 4)
    fr = {k: None for k in range(8)}
    for k in range(4): fr[k] = ocvt(k)
    A(f's_cmp_ge_u32 s{sIt}, s{sN}\ns_cbranch_scc1 L_p2_nopf')
    for key, t in prefetch(None): A(t)
    A('L_p2_nopf:')
    for k in range(8):
        for t in range(4):
            mf(OUT + 16 * t, fr[k], ar(16 * k + 4 * t, 4), vr(OUT + 16 * t, 16))
            if k == 0: fr[4 + t] = ocvt(4 + t)
    for j in range(8):
        d = O + 4 * j
        for e in range(2):
            r = 2 * j + e
            cvt(d + 2 * e, OUT + r, OUT + 16 + r); cvt(d + 2 * e + 1, OUT + 32 + r, OUT + 48 + r)
        A(f'v_and_or_b32 v{d}, v{d}, -2, s{sTag}')
        A(f'buffer_store_dwordx4 {vr(d, 4)}, v{vL16}, {srd(S_WS)}, s{sPs} offen sc1')
        if j < 7: A(f's_add_u32 s{sPs}, s{sPs}, 32768')
    R = O + 32; AC = OUT
    A(f's_mov_b32 s{sCnt}, 0\nL_p2_rs:\ns_mov_b32 s{sT0}, s{sPl}')
    for i in range(8):
        A(f'buffer_load_dwordx4 {vr(R + 4 * i, 4)}, v{vRa}, {srd(S_WS)}, s{sT0} offen sc1')
        if i < 7: A(f's_add_u32 s{sT0}, s{sT0}, 4096')
    A(f'''
    s_add_u32 s{sCnt}, s{sCnt}, 1
    s_cmp_gt_u32 s{sCnt}, {SPIN}
    s_cbranch_scc1 L_end
    v_mov_b32 v{vT0}, 0
    ''')
    for r in range(0, 8, 2): A(f'v_mov_b64 {vr(AC + r, 2)}, 0')
    for i in range(8):
        b = R + 4 * i
        A(f's_waitcnt vmcnt({7 - i})')
        A(f'v_bitop3_b32 v{vT0}, v{vT0}, v{b}, s{sTag} bitop3:0xf6')
        for d in range(4):
            A(f'v_dot2c_f32_bf16 v{AC + 2 * d}, s{sLo}, v{b + d}\nv_dot2c_f32_bf16 v{AC + 2 * d + 1}, s{sHi}, v{b + d}')
    A(f'''
    v_and_b32 v{vT0}, 1, v{vT0}
    v_cmp_ne_u32 vcc, 0, v{vT0}
    s_cbranch_vccnz L_p2_rs
    ''')
    for j in range(4): A(f'v_permlane32_swap_b32 v{AC + j}, v{AC + 4 + j}')
    for j in range(0, 4, 2): A(f'v_pk_add_f32 {vr(AC + j, 2)}, {vr(AC + j, 2)}, {vr(AC + 4 + j, 2)}')
    for j in range(2): A(f'v_permlane16_swap_b32 v{AC + j}, v{AC + 2 + j}')
    A(f'''
    v_pk_add_f32 {vr(AC, 2)}, {vr(AC, 2)}, {vr(AC + 2, 2)}
    v_lshlrev_b32 v{AC + 2}, 16, v{vXr}
    v_and_b32 v{AC + 3}, 0xffff0000, v{vXr}
    v_pk_add_f32 {vr(AC, 2)}, {vr(AC, 2)}, {vr(AC + 2, 2)}
    v_cvt_pk_bf16_f32 v{AC}, v{AC}, v{AC + 1}
    buffer_store_dword v{AC}, v{vOa}, {srd(S_OUT)}, s{sXo} offen
    ''')
    if ts:
        A(f's_memrealtime s[100:101]\ns_add_u32 s{sT0}, s{sIt}, 15\ns_mov_b32 m0, s{sT0}\ns_waitcnt lgkmcnt(0)\nv_writelane_b32 v255, s100, m0')
    A(f'''
    s_cmp_lt_u32 s{sIt}, s{sN}
    s_cbranch_scc1 L_p2_seg
    ''')
    if ts:
        A(f'''
        s_lshl_b32 s{sT0}, s{sSlot}, 8
        s_add_u32 s{sT0}, s{sT0}, {TW_BASE}
        v_lshrrev_b32 v17, 2, v{vL16}
        s_cmp_lg_u32 s{sW}, {opt.get('tsw', 0)}
        s_cbranch_scc1 L_end
        buffer_store_dword v255, v17, {srd(S_WS)}, s{sT0} offen
        ''')
    A('s_waitcnt vmcnt(0)\ns_branch L_end')
```

```python
import sys
from common import *
from chain import gen_chain
try:
    from worker import gen_worker
except ImportError:
    gen_worker = None


def gen(opt, name=NAME):
    A = Asm()
    A(f'''
    s_cmp_ge_u32 s2, 256
    s_cbranch_scc1 L_end
    s_load_dwordx16 s[44:59], s[0:1], 0
    s_load_dwordx8 s[60:67], s[0:1], 64
    s_load_dwordx4 s[68:71], s[0:1], 96
    s_getreg_b32 s3, hwreg(HW_REG_XCC_ID)
    v_lshrrev_b32 v1, 6, v0
    v_mov_b32 v4, 1
    v_readfirstlane_b32 s{sW}, v1
    s_min_u32 s4, s3, 8
    s_lshl_b32 s4, s4, 2
    v_mov_b32 v3, s4
    s_waitcnt lgkmcnt(0)
    s_mov_b32 s{S_DBG}, s68
    s_mov_b32 s{S_DBG+1}, s69
    s_cmp_lg_u32 s{sW}, 0
    s_cbranch_scc1 L_notk
    s_mov_b64 exec, 1
    global_atomic_add v5, v3, v4, s[{S_DBG}:{S_DBG+1}] offset:{DBG_TICKET} sc0
    s_mov_b64 exec, -1
    L_notk:
    ''')
    def mk(S, p, n):
        A(f's_mov_b32 s{S}, s{p}\ns_mov_b32 s{S+1}, s{p+1}\ns_mov_b32 s{S+2}, {hex(n)}\ns_mov_b32 s{S+3}, 0x20000')
    mk(S_X, 44, 2048 * 1024); mk(S_M0, 46, 8192)
    mk(S_WQ, 48, 1 << 22); mk(S_WK, 50, 1 << 22); mk(S_WV, 52, 1 << 22); mk(S_WO, 54, 1 << 22)
    mk(S_WG, 60, 512 * 3584); mk(S_WU, 62, 512 * 3584); mk(S_WD, 64, 1792 * 1024); mk(S_OUT, 66, 2048 * 1024)
    mk(S_WS, 70, WS_BYTES)
    force_ovf = opt.get('force_ovf', 0)
    A(f'''
    s_cmp_lg_u32 s{sW}, 0
    s_cbranch_scc1 L_tk_wait
    s_waitcnt vmcnt(0)
    v_readfirstlane_b32 s5, v5
    s_lshl_b32 s{sSlot}, s3, 5
    s_add_u32 s{sSlot}, s{sSlot}, s5
    s_cmp_ge_u32 s3, 8
    s_cbranch_scc1 L_ovf
    s_cmp_lt_u32 s5, {32 - force_ovf}
    s_cbranch_scc1 L_tk_pub
    L_ovf:
    v_mov_b32 v3, 0
    s_mov_b64 exec, 1
    global_atomic_add v5, v3, v4, s[{S_DBG}:{S_DBG+1}] offset:{DBG_OVF} sc0 sc1
    s_mov_b64 exec, -1
    v_lshlrev_b32 v6, 3, v0
    v_min_u32 v6, 64, v6
    s_mov_b32 s6, 0
    s_waitcnt vmcnt(0)
    v_readfirstlane_b32 s5, v5
    L_ovf_poll:
    global_load_dword v7, v6, s[{S_DBG}:{S_DBG+1}] offset:{DBG_BITS} sc1
    s_add_u32 s6, s6, 1
    s_cmp_gt_u32 s6, {SPIN}
    s_cbranch_scc1 L_ovf_fail
    s_waitcnt vmcnt(0)
    v_readlane_b32 s7, v7, 8
    ''')
    for x in range(8):
        A(f'v_readlane_b32 s4, v7, {x}\ns_bcnt1_i32_b32 s4, s4\ns_add_u32 s7, s7, s4')
    A(f'''
    s_cmp_lg_u32 s7, 256
    s_cbranch_scc1 L_ovf_poll
    s_mov_b32 s6, 0
    L_ovf_word:
    v_readlane_b32 s4, v7, s6
    s_bcnt0_i32_b32 s7, s4
    s_cmp_lt_u32 s5, s7
    s_cbranch_scc1 L_ovf_bit
    s_sub_u32 s5, s5, s7
    s_add_u32 s6, s6, 1
    s_cmp_lt_u32 s6, 8
    s_cbranch_scc1 L_ovf_word
    L_ovf_fail:
    s_mov_b32 s{sSlot}, 0x10000
    s_branch L_tk_pub
    L_ovf_bit:
    s_ff0_i32_b32 s7, s4
    s_cmp_eq_u32 s5, 0
    s_cbranch_scc1 L_ovf_got
    s_bitset1_b32 s4, s7
    s_sub_u32 s5, s5, 1
    s_branch L_ovf_bit
    L_ovf_got:
    s_lshl_b32 s{sSlot}, s6, 5
    s_add_u32 s{sSlot}, s{sSlot}, s7
    s_bitset1_b32 s{sSlot}, 8
    L_tk_pub:
    v_mov_b32 v3, 0
    v_mov_b32 v5, s{sSlot}
    ds_write_b32 v3, v5
    s_waitcnt lgkmcnt(0)
    L_tk_wait:
    s_barrier
    v_mov_b32 v3, 0
    ds_read_b32 v5, v3
    s_waitcnt lgkmcnt(0)
    v_readfirstlane_b32 s{sSlot}, v5
    s_barrier
    s_cmp_ge_u32 s{sSlot}, 512
    s_cbranch_scc1 L_end
    s_lshr_b32 s{sOvf}, s{sSlot}, 8
    s_and_b32 s{sSlot}, s{sSlot}, 255
    s_mov_b32 s{sH}, s{sSlot}
    s_cmp_lt_u32 s{sSlot}, 32
    s_cbranch_scc1 L_chain
    ''')
    if opt.get('workers', True):
        gen_worker(A, opt)
    else:
        A(f's_cmp_lg_u32 s{sW}, 0\ns_cbranch_scc1 L_end')
        signal_init(A, 3, 4, 4)
        A('s_waitcnt vmcnt(0)\ns_branch L_end')
    gen_chain(A, opt)
    A('L_end:\ns_endpgm')
    body = A.finish(opt.get('verbose', False))
    hdr = f'''; @launch grid=(256,1,1) block=(256,1,1) lds=163840
.amdgcn_target "amdgcn-amd-amdhsa--gfx950"
.text
.globl {name}_kernel
.p2align 8
.type {name}_kernel,@function
{name}_kernel:
'''
    ftr = f'''.section .rodata,"a"
.p2align 6
.amdhsa_kernel {name}_kernel
  .amdhsa_next_free_vgpr 512
  .amdhsa_next_free_sgpr 102
  .amdhsa_accum_offset 256
  .amdhsa_group_segment_fixed_size 0
  .amdhsa_kernarg_size 112
  .amdhsa_user_sgpr_count 2
  .amdhsa_user_sgpr_kernarg_segment_ptr 1
  .amdhsa_system_sgpr_workgroup_id_x 1
.end_amdhsa_kernel
'''
    return hdr + body + ftr

if __name__ == '__main__':
    opt = eval(sys.argv[2]) if len(sys.argv) > 2 else {}
    txt = gen(opt)
    if opt.get('final'):
        txt = open('cdna_kernels/' + NAME + '.s.ref').read().split('; Override launch')[0] + txt
    open(sys.argv[1], 'w').write(txt)
```
